```python
import torch

def _softmax(x, axis=-1):
    return torch.softmax(x, dim=axis)
def _gelu(x):
    return torch.nn.functional.gelu(x, approximate="tanh")
def _silu(x):
    return torch.nn.functional.silu(x)
def _sigmoid(x):
    return torch.sigmoid(x)
def _layernorm(x, axis=-1, eps=1e-5):
    m = x.mean(dim=axis, keepdim=True)
    v = x.var(dim=axis, keepdim=True, unbiased=False)
    return (x - m) / torch.sqrt(v + eps)
def _scatter_add(tgt, idx, src, axis=0):
    return tgt.clone().index_add_(axis, idx, src)
def _segment_sum(src, seg, n):
    out = torch.zeros((n,) + src.shape[1:], dtype=src.dtype)
    return out.index_add_(0, seg, src)
def _pad(x, pw):
    flat = tuple(v for pair in reversed(pw) for v in pair)
    return torch.nn.functional.pad(x, flat)

kernel_name = 'sequential_preLN__spectral_fnet__moe_arch_mod__prompt'

def setup_inputs():

    _w = (lambda a: (lambda t: t.to(torch.bfloat16) if t.is_floating_point() else t)(torch.as_tensor(a)))
    def _A_setup():
        B, S, D = 1, 2048, 640
        ns = torch.arange(S)[:, None] * torch.arange(S)[None, :]
        nd = torch.arange(D)[:, None] * torch.arange(D)[None, :]
        Ws_re = torch.cos(-2.0 * torch.pi * ns / S).to(float)
        Ws_im = torch.sin(-2.0 * torch.pi * ns / S).to(float)
        Wd_re = torch.cos(-2.0 * torch.pi * nd / D).to(float)
        Wd_im = torch.sin(-2.0 * torch.pi * nd / D).to(float)
        return {
            "x": _w((lambda *s: torch.randn(*s, dtype=torch.bfloat16) * 0.1)(B, S, D)),
            "dft_seq_re": _w(Ws_re),
            "dft_seq_im": _w(Ws_im),
            "dft_hid_re": _w(Wd_re),
            "dft_hid_im": _w(Wd_im),
        }
    _A_in = _A_setup()

    def _B_setup():
        B, S, D, F, C = 1, 2048, 640, 1536, 8
        return {
            "x": _w((lambda *s: torch.randn(*s, dtype=torch.bfloat16) * 0.1)(B, S, D)),
            "w_r": _w((lambda *s: torch.randn(*s, dtype=torch.bfloat16) * 1.6)(D)),
            "w_gate": _w((lambda *s: torch.randn(*s, dtype=torch.bfloat16) * 0.8)(D, F)),
            "w_up": _w((lambda *s: torch.randn(*s, dtype=torch.bfloat16) * 0.8)(D, F)),
            "w_down": _w((lambda *s: torch.randn(*s, dtype=torch.bfloat16) * 0.8)(F, D)),
        }
    _B_in = _B_setup()

    return {
        "A_x": _A_in["x"],
        "A_dft_seq_re": _A_in["dft_seq_re"],
        "A_dft_seq_im": _A_in["dft_seq_im"],
        "A_dft_hid_re": _A_in["dft_hid_re"],
        "A_dft_hid_im": _A_in["dft_hid_im"],
        "B_x": _B_in["x"],
        "B_w_r": _B_in["w_r"],
        "B_w_gate": _B_in["w_gate"],
        "B_w_up": _B_in["w_up"],
        "B_w_down": _B_in["w_down"],
    }

def reference(A_x, A_dft_seq_re, A_dft_seq_im, A_dft_hid_re, A_dft_hid_im, B_x, B_w_r, B_w_gate, B_w_up, B_w_down):
    def _A_ref(x, dft_seq_re, dft_seq_im, dft_hid_re, dft_hid_im):
        a = torch.einsum("bsd,ed->bse", x, dft_hid_re)
        b = torch.einsum("bsd,ed->bse", x, dft_hid_im)
        y = torch.einsum("ts,bse->bte", dft_seq_re, a) - torch.einsum("ts,bse->bte", dft_seq_im, b)
        return y

    def _B_ref(x, w_r, w_gate, w_up, w_down):
        B, S, D = x.shape
        C = 8
        r = x @ w_r
        idx = torch.argsort(-r, axis=-1)[:, :C]
        idx_e = (lambda x, n, axis: torch.repeat_interleave(x, n, dim=axis))(idx.reshape(B, C, 1), D, axis=2)
        x_sel = (lambda x, i, axis: torch.take_along_dim(x, i, dim=axis))(x, idx_e, axis=1)
        g = _silu(x_sel @ w_gate)
        u = x_sel @ w_up
        y = (g * u) @ w_down
        r_sel = _sigmoid((lambda x, i, axis: torch.take_along_dim(x, i, dim=axis))(r, idx, axis=1))
        y = y * r_sel.reshape(B, C, 1)
        b_off = (torch.arange(B) * S).reshape(B, 1)
        flat_idx = (idx + b_off).reshape(B * C)
        zero = (x * 0.0).reshape(B * S, D)
        upd = _scatter_add(zero, flat_idx, y.reshape(B * C, D), axis=0)
        return x + upd.reshape(B, S, D)

    x = A_x
    h = x + _A_ref(_layernorm(x, axis=-1), A_dft_seq_re, A_dft_seq_im, A_dft_hid_re, A_dft_hid_im)
    h2 = h + _B_ref(_layernorm(h, axis=-1), B_w_r, B_w_gate, B_w_up, B_w_down)
    return h2
```

```python
import sys

NAME = "sequential_preLN__spectral_fnet__moe_arch_mod__prompt"
S, D, F = 2048, 640, 1536
MB = 1 << 20
XL_OFF = 0
ABT_OFF = 4 * MB
Y_OFF = 12 * MB
H_OFF = 20 * MB
HL_OFF = 24 * MB
R_OFF = 28 * MB
IDX_OFF = R_OFF + 8192
T_OFF = R_OFF + 16384
WS_SIZE = 32 * MB

out = []


def A(s):
    out.append("    " + s)


def L(s):
    out.append(s + ":")


def begin_kernel(name):
    out.append(".globl %s" % name)
    out.append(".p2align 8")
    out.append(".type %s,@function" % name)
    out.append("%s:" % name)


kds = []


def end_kernel(name, vgpr, sgpr=102):
    A("s_endpgm")
    kds.append((name, vgpr, sgpr))


def srd(d, lo, nbytes, add=None):
    if add:
        A("s_add_u32 s%d, s%d, 0x%x" % (d, lo, add))
        A("s_addc_u32 s%d, s%d, 0" % (d + 1, lo + 1))
    else:
        A("s_mov_b32 s%d, s%d" % (d, lo))
        A("s_mov_b32 s%d, s%d" % (d + 1, lo + 1))
    A("s_mov_b32 s%d, 0x%x" % (d + 2, nbytes))
    A("s_mov_b32 s%d, 0x00020000" % (d + 3))


def wave_reduce(op, v, sdst):
    for m in ["quad_perm:[1,0,3,2] row_mask:0xf bank_mask:0xf",
              "quad_perm:[2,3,0,1] row_mask:0xf bank_mask:0xf",
              "row_half_mirror row_mask:0xf bank_mask:0xf",
              "row_mirror row_mask:0xf bank_mask:0xf",
              "row_bcast:15 row_mask:0xa bank_mask:0xf",
              "row_bcast:31 row_mask:0xc bank_mask:0xf"]:
        A("s_nop 1")
        A("v_%s_dpp v%d, v%d, v%d %s" % (op, v, v, v, m))
    A("s_nop 0")
    A("v_readlane_b32 s%d, v%d, 63" % (sdst, v))
    A("s_nop 1")


def bf_round(vd, vs):
    A("v_cvt_pk_bf16_f32 v%d, v%d, v%d" % (vd, vs, vs))
    A("v_lshlrev_b32 v%d, 16, v%d" % (vd, vd))


def unpack(vlo, vhi, vs):
    A("v_lshlrev_b32 v%d, 16, v%d" % (vlo, vs))
    A("v_and_b32 v%d, 0xffff0000, v%d" % (vhi, vs))


def layernorm10(f, q, t, sA):
    t0, t1, t2, t3, t4, t5 = t
    A("v_add_f32 v%d, v%d, v%d" % (t0, f[0], f[1]))
    for i in range(2, 10):
        A("v_add_f32 v%d, v%d, v%d" % (t0, t0, f[i]))
    wave_reduce("add_f32", t0, sA)
    A("v_mov_b32 v%d, s%d" % (t1, sA))
    A("v_mul_f32 v%d, 0x3acccccd, v%d" % (t1, t1))
    A("v_mov_b32 v%d, 0" % t2)
    for i in range(10):
        A("v_sub_f32 v%d, v%d, v%d" % (t3, f[i], t1))
        A("v_fmac_f32 v%d, v%d, v%d" % (t2, t3, t3))
    wave_reduce("add_f32", t2, sA)
    A("v_mov_b32 v%d, s%d" % (t2, sA))
    A("v_mul_f32 v%d, 0x3acccccd, v%d" % (t2, t2))
    bf_round(t1, t1)
    bf_round(t2, t2)
    A("v_add_f32 v%d, 0x3727c5ac, v%d" % (t2, t2))
    bf_round(t2, t2)
    A("v_sqrt_f32 v%d, v%d" % (t2, t2))
    A("s_nop 0")
    bf_round(t2, t2)
    A("v_rcp_f32 v%d, v%d" % (t3, t2))
    A("s_nop 0")
    for i in range(0, 10, 2):
        A("v_sub_f32 v%d, v%d, v%d" % (t4, f[i], t1))
        A("v_sub_f32 v%d, v%d, v%d" % (t5, f[i + 1], t1))
        A("v_cvt_pk_bf16_f32 v%d, v%d, v%d" % (t4, t4, t5))
        unpack(q[i], q[i + 1], t4)
    for i in range(10):
        A("v_mul_f32 v%d, v%d, v%d" % (t4, q[i], t3))
        A("v_fma_f32 v%d, -v%d, v%d, v%d" % (t5, t4, t2, q[i]))
        A("v_fma_f32 v%d, v%d, v%d, v%d" % (q[i], t5, t3, t4))
    for i in range(0, 10, 2):
        A("v_cvt_pk_bf16_f32 v%d, v%d, v%d" % (t4, q[i], q[i + 1]))
        unpack(q[i], q[i + 1], t4)


def k_lnx():
    name = "lnx_kernel"
    begin_kernel(name)
    A("s_cmp_ge_u32 s2, 512")
    A("s_cbranch_scc1 %s_done" % name)
    A("s_load_dwordx2 s[4:5], s[0:1], 0")
    A("s_load_dwordx2 s[6:7], s[0:1], 96")
    A("v_lshrrev_b32 v1, 6, v0")
    A("s_lshl_b32 s3, s2, 2")
    A("v_add_u32 v1, s3, v1")
    A("v_mul_u32_u24 v1, 1280, v1")
    A("v_and_b32 v2, 63, v0")
    A("v_lshl_add_u32 v1, v2, 2, v1")
    A("s_waitcnt lgkmcnt(0)")
    srd(8, 4, S * D * 2)
    srd(12, 6, S * D * 2, XL_OFF)
    for i in range(5):
        A("buffer_load_dword v%d, v1, s[8:11], 0 offen offset:%d" % (10 + i, i * 256))
    A("s_waitcnt vmcnt(0)")
    f = list(range(20, 30))
    q = list(range(30, 40))
    for i in range(5):
        unpack(f[2 * i], f[2 * i + 1], 10 + i)
    layernorm10(f, q, [40, 41, 42, 43, 44, 45], 20)
    for i in range(5):
        A("v_cvt_pk_bf16_f32 v%d, v%d, v%d" % (10 + i, q[2 * i], q[2 * i + 1]))
        A("buffer_store_dword v%d, v1, s[12:15], 0 offen offset:%d" % (10 + i, i * 256))
    L(name + "_done")
    end_kernel(name, 48)


def k_gemm(name, nwg, decode, a_arg0, a_arg1, a_bytes, pitchA, b_off, b_zstride, b_bytes, pitchB,
           o_off, o_zstride, o_bytes, pitchO, K, BN, PF):
    NT = BN // 16
    CH = BN // 16
    NS = K // 128
    RING = PF + 1
    BUFSZ = BN * 256
    begin_kernel(name)
    A("s_cmp_ge_u32 s2, %d" % nwg)
    A("s_cbranch_scc1 %s_done" % name)
    A("s_load_dwordx2 s[4:5], s[0:1], %d" % a_arg0)
    A("s_load_dwordx2 s[6:7], s[0:1], %d" % a_arg1)
    A("s_load_dwordx2 s[24:25], s[0:1], 96")
    decode()
    A("v_and_b32 v1, 63, v0")
    A("v_and_b32 v2, 15, v0")
    A("v_lshrrev_b32 v3, 4, v1")
    A("v_lshrrev_b32 v4, 6, v0")
    A("s_nop 0")
    A("v_readfirstlane_b32 s23, v4")
    A("s_waitcnt lgkmcnt(0)")
    A("s_cmp_eq_u32 s22, 0")
    A("s_cselect_b32 s4, s4, s6")
    A("s_cselect_b32 s5, s5, s7")
    srd(8, 4, a_bytes)
    A("s_mul_i32 s26, s22, 0x%x" % b_zstride)
    A("s_add_u32 s26, s26, 0x%x" % b_off)
    A("s_add_u32 s12, s24, s26")
    A("s_addc_u32 s13, s25, 0")
    A("s_mov_b32 s14, 0x%x" % b_bytes)
    A("s_mov_b32 s15, 0x00020000")
    A("s_mul_i32 s26, s22, 0x%x" % o_zstride)
    A("s_add_u32 s26, s26, 0x%x" % o_off)
    A("s_add_u32 s16, s24, s26")
    A("s_addc_u32 s17, s25, 0")
    A("s_mov_b32 s18, 0x%x" % o_bytes)
    A("s_mov_b32 s19, 0x00020000")
    A("s_lshl_b32 s26, s20, 7")
    A("s_lshl_b32 s27, s23, 5")
    A("s_add_u32 s26, s26, s27")
    A("v_add_u32 v5, s26, v2")
    A("s_mov_b32 s27, %d" % pitchA)
    A("v_mul_lo_u32 v6, v5, s27")
    A("v_lshl_add_u32 v6, v3, 5, v6")
    A("v_add_u32 v7, %d, v6" % (16 * pitchA))
    A("s_mov_b32 s27, %d" % pitchO)
    A("v_mul_lo_u32 v8, v5, s27")
    A("s_mul_i32 s26, s21, %d" % (BN * 2))
    A("v_add_u32 v8, s26, v8")
    A("v_lshl_add_u32 v8, v3, 3, v8")
    A("v_add_u32 v9, %d, v8" % (16 * pitchO))
    vB = 10
    for j in range(CH):
        A("s_mul_i32 s26, s23, %d" % (CH * 4))
        A("s_add_u32 s26, s26, %d" % (4 * j))
        A("v_add_u32 v30, s26, v3")
        A("v_and_b32 v31, 15, v30")
        A("v_xor_b32 v31, v31, v2")
        A("s_mul_i32 s27, s21, %d" % BN)
        A("v_add_u32 v30, s27, v30")
        A("s_mov_b32 s27, %d" % pitchB)
        A("v_mul_lo_u32 v30, v30, s27")
        A("v_lshl_add_u32 v%d, v31, 4, v30" % (vB + j))
    vL = vB + CH
    for step in range(4):
        A("v_lshlrev_b32 v30, 1, v3")
        A("v_add_u32 v30, %d, v30" % ((step >> 1) * 8 + (step & 1)))
        A("v_xor_b32 v30, v30, v2")
        A("v_lshlrev_b32 v30, 4, v30")
        A("v_lshl_add_u32 v%d, v2, 8, v30" % (vL + step))
        A("v_add_u32 v%d, 0x10000, v%d" % (vL + 4 + step, vL + step))
    A("s_mul_i32 s28, s23, %d" % (CH * 1024))
    base = (vL + 8 + 3) // 4 * 4
    vAcc = base
    vBf = vAcc + 2 * NT * 4
    vA = vBf + 2 * NT * 4
    vend = vA + RING * 32
    assert vend <= 256, vend

    def acc(t, n):
        return vAcc + (t * NT + n) * 4

    def issue(stage):
        buf = stage % RING
        A("s_mov_b32 s29, %d" % (stage * 256))
        for j in range(CH):
            A("s_add_u32 m0, s28, %d" % (buf * BUFSZ + j * 1024))
            A("s_nop 0")
            A("buffer_load_dwordx4 v%d, s[12:15], s29 offen lds" % (vB + j))
        for t in range(2):
            for step in range(4):
                r = vA + buf * 32 + (t * 4 + step) * 4
                A("buffer_load_dwordx4 v[%d:%d], v%d, s[8:11], 0 offen offset:%d" % (
                    r, r + 3, 6 + t, stage * 256 + (step >> 1) * 128 + (step & 1) * 16))

    def reads(stage, step, st):
        buf = stage % RING
        for n in range(NT):
            r = vBf + (st * NT + n) * 4
            off = buf * BUFSZ + n * 4096
            A("ds_read_b128 v[%d:%d], v%d offset:%d" % (r, r + 3, vL + step + (4 if off >= 65536 else 0), off & 65535))

    def mfmas(stage, step, st):
        buf = stage % RING
        for t in range(2):
            for n in range(NT):
                a = acc(t, n)
                b = vBf + (st * NT + n) * 4
                r = vA + buf * 32 + (t * 4 + step) * 4
                A("v_mfma_f32_16x16x32_bf16 v[%d:%d], v[%d:%d], v[%d:%d], v[%d:%d]" % (
                    a, a + 3, b, b + 3, r, r + 3, a, a + 3))

    LPS = CH + 8
    for s in range(min(PF, NS)):
        issue(s)
    for i in range(2 * NT * 4):
        A("v_mov_b32 v%d, 0" % (vAcc + i))
    A("s_waitcnt vmcnt(%d)" % (LPS * (min(PF, NS) - 1)))
    A("s_barrier")
    st = 0
    reads(0, 0, st)
    for s in range(NS):
        if s + PF < NS:
            issue(s + PF)
        for step in range(4):
            if step < 3:
                reads(s, step + 1, st ^ 1)
                A("s_waitcnt lgkmcnt(%d)" % NT)
            elif s + 1 < NS:
                outst = LPS * (min(s + PF, NS - 1) - (s + 1))
                A("s_waitcnt vmcnt(%d) lgkmcnt(0)" % outst)
                A("s_barrier")
                reads(s + 1, 0, st ^ 1)
            else:
                A("s_waitcnt lgkmcnt(0)")
            mfmas(s, step, st)
            st ^= 1
    A("s_nop 7")
    A("s_nop 1")
    for t in range(2):
        for n in range(NT):
            a = acc(t, n)
            A("v_cvt_pk_bf16_f32 v%d, v%d, v%d" % (a, a, a + 1))
            A("v_cvt_pk_bf16_f32 v%d, v%d, v%d" % (a + 1, a + 2, a + 3))
            A("buffer_store_dwordx2 v[%d:%d], v%d, s[16:19], 0 offen offset:%d" % (a, a + 1, 8 + t, n * 32))
    L(name + "_done")
    end_kernel(name, vend)
    return RING * BUFSZ


def dec_g1():
    A("s_mul_hi_u32 s21, s2, 0x1999999a")
    A("s_mul_i32 s26, s21, 10")
    A("s_sub_u32 s26, s2, s26")
    A("s_cmp_ge_u32 s26, 5")
    A("s_cselect_b32 s22, 1, 0")
    A("s_mul_i32 s27, s22, 5")
    A("s_sub_u32 s20, s26, s27")


def dec_g2():
    A("s_and_b32 s26, s2, 7")
    A("s_lshr_b32 s27, s2, 3")
    A("s_and_b32 s21, s27, 7")
    A("s_lshr_b32 s27, s27, 3")
    A("s_lshl_b32 s26, s26, 2")
    A("s_add_u32 s26, s26, s27")
    A("s_and_b32 s20, s26, 15")
    A("s_lshr_b32 s22, s26, 4")


def k_ln2():
    name = "ln2_kernel"
    begin_kernel(name)
    A("s_cmp_ge_u32 s2, 512")
    A("s_cbranch_scc1 %s_done" % name)
    A("s_load_dwordx2 s[4:5], s[0:1], 0")
    A("s_load_dwordx2 s[6:7], s[0:1], 96")
    A("s_load_dwordx2 s[24:25], s[0:1], 48")
    A("s_load_dwordx2 s[26:27], s[0:1], 80")
    A("v_lshrrev_b32 v1, 6, v0")
    A("s_lshl_b32 s3, s2, 2")
    A("v_add_u32 v3, s3, v1")
    A("v_mul_u32_u24 v1, 1280, v3")
    A("v_and_b32 v2, 63, v0")
    A("v_lshl_add_u32 v1, v2, 2, v1")
    A("v_lshlrev_b32 v4, 2, v2")
    A("s_waitcnt lgkmcnt(0)")
    srd(8, 4, S * D * 2)
    srd(12, 6, WS_SIZE)
    srd(16, 24, D * 2)
    srd(28, 26, S * D * 2)
    A("s_mov_b32 s20, 0x%x" % Y_OFF)
    A("s_mov_b32 s21, 0x%x" % (Y_OFF + S * D * 2))
    for i in range(5):
        A("buffer_load_dword v%d, v1, s[8:11], 0 offen offset:%d" % (10 + i, i * 256))
        A("buffer_load_dword v%d, v1, s[12:15], s20 offen offset:%d" % (15 + i, i * 256))
        A("buffer_load_dword v%d, v1, s[12:15], s21 offen offset:%d" % (50 + i, i * 256))
        A("buffer_load_dword v%d, v4, s[16:19], 0 offen offset:%d" % (55 + i, i * 256))
    A("s_waitcnt vmcnt(0)")
    f = list(range(20, 30))
    q = list(range(30, 40))
    for i in range(5):
        unpack(60, 61, 15 + i)
        unpack(62, 63, 50 + i)
        A("v_sub_f32 v60, v60, v62")
        A("v_sub_f32 v61, v61, v63")
        A("v_cvt_pk_bf16_f32 v62, v60, v61")
        unpack(60, 61, 62)
        unpack(62, 63, 10 + i)
        A("v_add_f32 v60, v60, v62")
        A("v_add_f32 v61, v61, v63")
        A("v_cvt_pk_bf16_f32 v%d, v60, v61" % (15 + i))
        unpack(f[2 * i], f[2 * i + 1], 15 + i)
    layernorm10(f, q, [40, 41, 42, 43, 44, 45], 20)
    A("v_mov_b32 v40, 0")
    for i in range(5):
        unpack(60, 61, 55 + i)
        A("v_fmac_f32 v40, v60, v%d" % q[2 * i])
        A("v_fmac_f32 v40, v61, v%d" % q[2 * i + 1])
    wave_reduce("add_f32", 40, 20)
    A("v_mov_b32 v40, s20")
    A("v_cvt_pk_bf16_f32 v40, v40, v40")
    A("s_mov_b32 s20, 0x%x" % H_OFF)
    A("s_mov_b32 s21, 0x%x" % HL_OFF)
    for i in range(5):
        A("v_cvt_pk_bf16_f32 v%d, v%d, v%d" % (50 + i, q[2 * i], q[2 * i + 1]))
        A("v_add_f32 v60, v%d, v%d" % (f[2 * i], q[2 * i]))
        A("v_add_f32 v61, v%d, v%d" % (f[2 * i + 1], q[2 * i + 1]))
        A("v_cvt_pk_bf16_f32 v%d, v60, v61" % (10 + i))
        A("buffer_store_dword v%d, v1, s[28:31], 0 offen offset:%d" % (10 + i, i * 256))
        A("buffer_store_dword v%d, v1, s[12:15], s20 offen offset:%d" % (15 + i, i * 256))
        A("buffer_store_dword v%d, v1, s[12:15], s21 offen offset:%d" % (50 + i, i * 256))
    A("v_lshlrev_b32 v3, 1, v3")
    A("s_mov_b32 s20, 0x%x" % R_OFF)
    A("v_cmp_eq_u32 vcc, 0, v2")
    A("s_and_saveexec_b64 s[22:23], vcc")
    A("buffer_store_short v40, v3, s[12:15], s20 offen")
    L(name + "_done")
    end_kernel(name, 64)


def k_ffn1():
    name = "ffn1_kernel"
    begin_kernel(name)
    A("s_cmp_ge_u32 s2, 96")
    A("s_cbranch_scc1 %s_done" % name)
    A("s_load_dwordx2 s[4:5], s[0:1], 56")
    A("s_load_dwordx2 s[6:7], s[0:1], 64")
    A("s_load_dwordx2 s[24:25], s[0:1], 96")
    A("v_and_b32 v1, 63, v0")
    A("v_and_b32 v2, 15, v0")
    A("v_lshrrev_b32 v3, 4, v1")
    A("v_lshrrev_b32 v4, 6, v0")
    A("s_waitcnt lgkmcnt(0)")
    srd(8, 4, D * F * 2)
    srd(12, 6, D * F * 2)
    srd(16, 24, WS_SIZE)
    A("v_lshlrev_b32 v5, 4, v0")
    A("s_mov_b32 s20, 0x%x" % R_OFF)
    A("buffer_load_dwordx4 v[8:11], v5, s[16:19], s20 offen")
    A("v_mul_u32_u24 v5, 160, v4")
    A("v_lshl_add_u32 v5, v3, 3, v5")
    A("v_mul_u32_u24 v5, 3072, v5")
    A("s_lshl_b32 s20, s2, 4")
    A("v_add_u32 v6, s20, v2")
    A("v_lshl_add_u32 v5, v6, 1, v5")
    vG, vU = 64, 84
    rG, rU = 128, 168
    for step in range(5):
        for j in range(8):
            A("s_mov_b32 s20, %d" % ((step * 32 + j) * 3072))
            A("buffer_load_ushort v%d, v5, s[8:11], s20 offen" % (rG + step * 8 + j))
            A("buffer_load_ushort v%d, v5, s[12:15], s20 offen" % (rU + step * 8 + j))
    A("s_waitcnt vmcnt(63)")
    A("s_nop 0")
    A("s_waitcnt vmcnt(40)")
    A("s_waitcnt vmcnt(80)") if False else None
    A("s_mov_b32 s21, 0x7fff")
    A("v_lshlrev_b32 v6, 3, v0")
    A("v_sub_u32 v6, 2047, v6")
    A("s_waitcnt vmcnt(0)")
    for i in range(20):
        A("v_lshl_or_b32 v%d, v%d, 16, v%d" % (vG + i, rG + 2 * i + 1, rG + 2 * i))
        A("v_lshl_or_b32 v%d, v%d, 16, v%d" % (vU + i, rU + 2 * i + 1, rU + 2 * i))
    for i in range(8):
        d = 8 + i // 2
        if i & 1:
            A("v_lshrrev_b32 v20, 16, v%d" % d)
        else:
            A("v_and_b32 v20, 0xffff, v%d" % d)
        A("v_bfe_i32 v21, v20, 15, 1")
        A("v_and_b32 v21, s21, v21")
        A("v_or_b32 v21, 0x8000, v21")
        A("v_xor_b32 v20, v20, v21")
        A("v_subrev_u32 v21, %d, v6" % i)
        A("v_lshl_or_b32 v%d, v20, 11, v21" % (24 + i))
    for rnd in range(8):
        A("v_max3_u32 v20, v24, v25, v26")
        A("v_max3_u32 v20, v20, v27, v28")
        A("v_max3_u32 v20, v20, v29, v30")
        A("v_max_u32 v20, v20, v31")
        wave_reduce("max_u32", 20, 20)
        A("v_mov_b32 v20, s20")
        A("v_lshlrev_b32 v21, 2, v4")
        A("ds_write_b32 v21, v20 offset:%d" % (rnd * 16))
        A("s_waitcnt lgkmcnt(0)")
        A("s_barrier")
        A("v_mov_b32 v21, 0")
        A("ds_read_b128 v[32:35], v21 offset:%d" % (rnd * 16))
        A("s_waitcnt lgkmcnt(0)")
        A("v_max3_u32 v20, v32, v33, v34")
        A("v_max_u32 v20, v20, v35")
        for i in range(8):
            A("v_cmp_eq_u32 vcc, v20, v%d" % (24 + i))
            A("s_nop 1")
            A("v_cndmask_b32 v%d, v%d, 0, vcc" % (24 + i, 24 + i)) if False else None
            A("v_cndmask_b32_e64 v%d, v%d, 0, vcc" % (24 + i, 24 + i))
        A("v_and_b32 v21, 2047, v20")
        A("v_sub_u32 v21, 2047, v21")
        A("s_nop 0")
        A("v_readfirstlane_b32 s%d, v21" % (40 + rnd))
    A("v_and_b32 v20, 7, v1")
    A("v_mov_b32 v21, s40")
    for j in range(1, 8):
        A("v_cmp_eq_u32 vcc, %d, v20" % j)
        A("v_mov_b32 v22, s%d" % (40 + j))
        A("s_nop 0")
        A("v_cndmask_b32 v21, v21, v22, vcc")
    A("v_mul_u32_u24 v21, 1280, v21")
    A("v_mul_u32_u24 v22, 320, v4")
    A("v_add_u32 v21, v21, v22")
    A("v_lshl_add_u32 v21, v3, 4, v21")
    A("s_mov_b32 s20, 0x%x" % HL_OFF)
    vX = 104
    for step in range(5):
        A("buffer_load_dwordx4 v[%d:%d], v21, s[16:19], s20 offen offset:%d" % (vX + step * 4, vX + step * 4 + 3, step * 64))
    for i in range(8):
        A("v_mov_b32 v%d, 0" % (40 + i))
    A("s_waitcnt vmcnt(0)")
    for step in range(5):
        x = vX + step * 4
        A("v_mfma_f32_16x16x32_bf16 v[40:43], v[%d:%d], v[%d:%d], v[40:43]" % (x, x + 3, vG + step * 4, vG + step * 4 + 3))
        A("v_mfma_f32_16x16x32_bf16 v[44:47], v[%d:%d], v[%d:%d], v[44:47]" % (x, x + 3, vU + step * 4, vU + step * 4 + 3))
    A("s_nop 7")
    A("s_nop 1")
    A("v_lshlrev_b32 v20, 4, v1")
    A("v_lshl_add_u32 v20, v4, 11, v20")
    A("ds_write_b128 v20, v[40:43] offset:256")
    A("ds_write_b128 v20, v[44:47] offset:1280")
    A("s_waitcnt lgkmcnt(0)")
    A("s_barrier")
    A("v_cmp_gt_u32 vcc, 32, v0")
    A("s_and_saveexec_b64 s[22:23], vcc")
    A("s_cbranch_execz %s_done" % name)
    A("v_lshlrev_b32 v20, 4, v1")
    for w in range(1, 4):
        A("ds_read_b128 v[48:51], v20 offset:%d" % (256 + w * 2048))
        A("ds_read_b128 v[52:55], v20 offset:%d" % (1280 + w * 2048))
        A("s_waitcnt lgkmcnt(0)")
        for i in range(8):
            A("v_add_f32 v%d, v%d, v%d" % (40 + i, 40 + i, 48 + i))
    A("s_mov_b32 s20, 0x%x" % T_OFF)
    A("s_lshl_b32 s21, s2, 4")
    A("v_add_u32 v21, s21, v2")
    A("v_lshlrev_b32 v21, 1, v21")
    A("v_mul_u32_u24 v22, %d, v3" % (4 * 3072))
    A("v_add_u32 v21, v21, v22")
    for r in range(4):
        bf_round(40 + r, 40 + r)
        bf_round(44 + r, 44 + r)
        A("v_mul_f32 v48, 0xbfb8aa3b, v%d" % (40 + r))
        A("v_exp_f32 v48, v48")
        A("s_nop 0")
        A("v_add_f32 v48, 1.0, v48")
        A("v_rcp_f32 v48, v48")
        A("s_nop 0")
        A("v_mul_f32 v48, v48, v%d" % (40 + r))
        bf_round(48, 48)
        A("v_mul_f32 v48, v48, v%d" % (44 + r))
        A("v_cvt_pk_bf16_f32 v48, v48, v48")
        A("buffer_store_short v48, v21, s[16:19], s20 offen")
        A("v_add_u32 v21, 3072, v21")
    A("s_cmp_lg_u32 s2, 0")
    A("s_cbranch_scc1 %s_done" % name)
    A("v_cmp_eq_u32 vcc, 0, v0")
    A("s_and_saveexec_b64 s[22:23], vcc")
    for j in range(8):
        A("v_mov_b32 v%d, s%d" % (40 + j, 40 + j))
    A("v_mov_b32 v20, 0")
    A("s_mov_b32 s20, 0x%x" % IDX_OFF)
    A("buffer_store_dwordx4 v[40:43], v20, s[16:19], s20 offen")
    A("buffer_store_dwordx4 v[44:47], v20, s[16:19], s20 offen offset:16")
    L(name + "_done")
    end_kernel(name, 208)


def k_ffn2():
    name = "ffn2_kernel"
    begin_kernel(name)
    A("s_cmp_ge_u32 s2, 40")
    A("s_cbranch_scc1 %s_done" % name)
    A("s_load_dwordx2 s[4:5], s[0:1], 72")
    A("s_load_dwordx2 s[6:7], s[0:1], 80")
    A("s_load_dwordx2 s[24:25], s[0:1], 96")
    A("v_and_b32 v1, 63, v0")
    A("v_and_b32 v2, 15, v0")
    A("v_lshrrev_b32 v3, 4, v1")
    A("v_lshrrev_b32 v4, 6, v0")
    A("s_waitcnt lgkmcnt(0)")
    srd(8, 4, D * F * 2)
    srd(12, 6, S * D * 2)
    srd(16, 24, WS_SIZE)
    A("s_add_u32 s26, s24, 0x%x" % IDX_OFF)
    A("s_addc_u32 s27, s25, 0")
    A("s_load_dwordx8 s[40:47], s[26:27], 0")
    A("v_mul_u32_u24 v5, 384, v4")
    A("v_lshl_add_u32 v5, v3, 3, v5")
    A("v_mul_u32_u24 v5, 1280, v5")
    A("s_lshl_b32 s20, s2, 4")
    A("v_add_u32 v6, s20, v2")
    A("v_lshl_add_u32 v5, v6, 1, v5")
    vW = 64
    rW = 160
    for step in range(12):
        for j in range(8):
            A("s_mov_b32 s20, %d" % ((step * 32 + j) * 1280))
            A("buffer_load_ushort v%d, v5, s[8:11], s20 offen" % (rW + step * 8 + j))
    A("v_and_b32 v20, 7, v1")
    A("v_mul_u32_u24 v20, 3072, v20")
    A("v_mul_u32_u24 v21, 768, v4")
    A("v_add_u32 v20, v20, v21")
    A("v_lshl_add_u32 v20, v3, 4, v20")
    A("s_mov_b32 s20, 0x%x" % T_OFF)
    vX = 112
    for step in range(12):
        A("buffer_load_dwordx4 v[%d:%d], v20, s[16:19], s20 offen offset:%d" % (vX + step * 4, vX + step * 4 + 3, step * 64))
    for i in range(4):
        A("v_mov_b32 v%d, 0" % (40 + i))
    A("s_waitcnt vmcnt(0)")
    for i in range(48):
        A("v_lshl_or_b32 v%d, v%d, 16, v%d" % (vW + i, rW + 2 * i + 1, rW + 2 * i))
    A("s_nop 1")
    for step in range(12):
        x = vX + step * 4
        A("v_mfma_f32_16x16x32_bf16 v[40:43], v[%d:%d], v[%d:%d], v[40:43]" % (x, x + 3, vW + step * 4, vW + step * 4 + 3))
    A("s_nop 7")
    A("s_nop 1")
    A("v_lshlrev_b32 v20, 4, v1")
    A("v_lshl_add_u32 v20, v4, 10, v20")
    A("ds_write_b128 v20, v[40:43]")
    A("s_waitcnt lgkmcnt(0)")
    A("s_barrier")
    A("v_cmp_gt_u32 vcc, 32, v0")
    A("s_and_saveexec_b64 s[22:23], vcc")
    A("s_cbranch_execz %s_done" % name)
    A("v_lshlrev_b32 v20, 4, v1")
    for w in range(1, 4):
        A("ds_read_b128 v[48:51], v20 offset:%d" % (w * 1024))
        A("s_waitcnt lgkmcnt(0)")
        for i in range(4):
            A("v_add_f32 v%d, v%d, v%d" % (40 + i, 40 + i, 48 + i))
    A("v_cmp_eq_u32 vcc, 1, v3")
    A("s_mov_b32 s20, 0x%x" % R_OFF)
    A("s_mov_b32 s21, 0x%x" % H_OFF)
    A("s_mov_b32 s28, 0x%x" % HL_OFF)
    for r in range(4):
        A("v_mov_b32 v20, s%d" % (40 + r))
        A("v_mov_b32 v21, s%d" % (44 + r))
        A("v_cndmask_b32 v20, v20, v21, vcc")
        A("v_lshlrev_b32 v21, 1, v20")
        A("buffer_load_ushort v%d, v21, s[16:19], s20 offen" % (52 + r))
        A("v_mul_u32_u24 v20, 1280, v20")
        A("v_lshl_add_u32 v%d, v6, 1, v20" % (56 + r))
        A("buffer_load_ushort v%d, v%d, s[16:19], s21 offen" % (60 + r, 56 + r))
        A("buffer_load_ushort v%d, v%d, s[16:19], s28 offen" % (48 + r, 56 + r))
    A("s_waitcnt vmcnt(0)")
    for r in range(4):
        bf_round(40 + r, 40 + r)
        A("v_lshlrev_b32 v20, 16, v%d" % (52 + r))
        A("v_mul_f32 v20, 0xbfb8aa3b, v20")
        A("v_exp_f32 v20, v20")
        A("s_nop 0")
        A("v_add_f32 v20, 1.0, v20")
        A("v_rcp_f32 v20, v20")
        A("s_nop 0")
        bf_round(20, 20)
        A("v_mul_f32 v20, v20, v%d" % (40 + r))
        bf_round(20, 20)
        A("v_lshlrev_b32 v21, 16, v%d" % (48 + r))
        A("v_add_f32 v20, v20, v21")
        bf_round(20, 20)
        A("v_lshlrev_b32 v21, 16, v%d" % (60 + r))
        A("v_add_f32 v20, v20, v21")
        A("v_cvt_pk_bf16_f32 v20, v20, v20")
        A("buffer_store_short v20, v%d, s[12:15], 0 offen" % (56 + r))
    L(name + "_done")
    end_kernel(name, 256)


def main():
    hdr = open("cdna_kernels/%s.s.ref" % NAME).read().split("; @launch")[0]
    body_start = len(out)
    out.append('.amdgcn_target "amdgcn-amd-amdhsa--gfx950"')
    out.append(".text")
    k_lnx()
    lds1 = k_gemm("g1_kernel", 160, dec_g1, 24, 32, D * D * 2, 1280, XL_OFF, 0, S * D * 2, 1280,
                  ABT_OFF, D * S * 2, D * S * 2, S * 2, 640, 128, 2)
    lds2 = k_gemm("g2_kernel", 256, dec_g2, 8, 16, S * S * 2, 4096, ABT_OFF, D * S * 2, D * S * 2, 4096,
                  Y_OFF, S * D * 2, S * D * 2, D * 2, 2048, 80, 3)
    k_ln2()
    k_ffn1()
    k_ffn2()
    launches = [
        "; @launch kernel=lnx_kernel grid=(512,1,1) block=(256,1,1) lds=0",
        "; @launch kernel=g1_kernel grid=(160,1,1) block=(256,1,1) lds=%d" % lds1,
        "; @launch kernel=g2_kernel grid=(256,1,1) block=(256,1,1) lds=%d" % lds2,
        "; @launch kernel=ln2_kernel grid=(512,1,1) block=(256,1,1) lds=0",
        "; @launch kernel=ffn1_kernel grid=(96,1,1) block=(256,1,1) lds=8448",
        "; @launch kernel=ffn2_kernel grid=(40,1,1) block=(256,1,1) lds=4096",
    ]
    txt = hdr + "\n".join(launches) + "\n" + "\n".join(out) + "\n"
    txt += '.section .rodata,"a"\n'
    for name, vgpr, sgpr in kds:
        acc = (vgpr + 3) // 4 * 4
        txt += ".p2align 6\n.amdhsa_kernel %s\n" % name
        txt += "  .amdhsa_next_free_vgpr %d\n  .amdhsa_next_free_sgpr %d\n  .amdhsa_accum_offset %d\n" % (vgpr, sgpr, acc)
        txt += "  .amdhsa_group_segment_fixed_size 0\n  .amdhsa_kernarg_size 104\n  .amdhsa_user_sgpr_count 2\n"
        txt += "  .amdhsa_user_sgpr_kernarg_segment_ptr 1\n  .amdhsa_system_sgpr_workgroup_id_x 1\n.end_amdhsa_kernel\n"
    dst = sys.argv[1] if len(sys.argv) > 1 else "cdna_kernels/%s.s" % NAME
    open(dst, "w").write(txt)


main()
```

```python
import sys, os
VAR = os.environ.get("VAR", "")

NAME = "sequential_preLN__spectral_fnet__moe_arch_mod__prompt"
S, D, F = 2048, 640, 1536
MB = 1 << 20
XL_OFF = 0
ABT_OFF = 4 * MB
Y_OFF = 12 * MB
H_OFF = 20 * MB
HL_OFF = 24 * MB
R_OFF = 28 * MB
IDX_OFF = R_OFF + 8192
T_OFF = R_OFF + 16384
WS_SIZE = 32 * MB

out = []


def A(s):
    out.append("    " + s)


def L(s):
    out.append(s + ":")


def begin_kernel(name):
    out.append(".globl %s" % name)
    out.append(".p2align 8")
    out.append(".type %s,@function" % name)
    out.append("%s:" % name)


kds = []


def end_kernel(name, vgpr, sgpr=102):
    A("s_endpgm")
    kds.append((name, vgpr, sgpr))


def srd(d, lo, nbytes, add=None):
    if add:
        A("s_add_u32 s%d, s%d, 0x%x" % (d, lo, add))
        A("s_addc_u32 s%d, s%d, 0" % (d + 1, lo + 1))
    else:
        A("s_mov_b32 s%d, s%d" % (d, lo))
        A("s_mov_b32 s%d, s%d" % (d + 1, lo + 1))
    A("s_mov_b32 s%d, 0x%x" % (d + 2, nbytes))
    A("s_mov_b32 s%d, 0x00020000" % (d + 3))


def wave_reduce(op, v, sdst):
    for m in ["quad_perm:[1,0,3,2] row_mask:0xf bank_mask:0xf",
              "quad_perm:[2,3,0,1] row_mask:0xf bank_mask:0xf",
              "row_half_mirror row_mask:0xf bank_mask:0xf",
              "row_mirror row_mask:0xf bank_mask:0xf",
              "row_bcast:15 row_mask:0xa bank_mask:0xf",
              "row_bcast:31 row_mask:0xc bank_mask:0xf"]:
        A("s_nop 1")
        A("v_%s_dpp v%d, v%d, v%d %s" % (op, v, v, v, m))
    A("s_nop 0")
    A("v_readlane_b32 s%d, v%d, 63" % (sdst, v))
    A("s_nop 1")


def bf_round(vd, vs):
    A("v_cvt_pk_bf16_f32 v%d, v%d, v%d" % (vd, vs, vs))
    A("v_lshlrev_b32 v%d, 16, v%d" % (vd, vd))


def unpack(vlo, vhi, vs):
    A("v_lshlrev_b32 v%d, 16, v%d" % (vlo, vs))
    A("v_and_b32 v%d, 0xffff0000, v%d" % (vhi, vs))


def layernorm10(f, q, t, sA):
    t0, t1, t2, t3, t4, t5 = t
    A("v_add_f32 v%d, v%d, v%d" % (t0, f[0], f[1]))
    for i in range(2, 10):
        A("v_add_f32 v%d, v%d, v%d" % (t0, t0, f[i]))
    wave_reduce("add_f32", t0, sA)
    A("v_mov_b32 v%d, s%d" % (t1, sA))
    A("v_mul_f32 v%d, 0x3acccccd, v%d" % (t1, t1))
    A("v_mov_b32 v%d, 0" % t2)
    for i in range(10):
        A("v_sub_f32 v%d, v%d, v%d" % (t3, f[i], t1))
        A("v_fmac_f32 v%d, v%d, v%d" % (t2, t3, t3))
    wave_reduce("add_f32", t2, sA)
    A("v_mov_b32 v%d, s%d" % (t2, sA))
    A("v_mul_f32 v%d, 0x3acccccd, v%d" % (t2, t2))
    bf_round(t1, t1)
    bf_round(t2, t2)
    A("v_add_f32 v%d, 0x3727c5ac, v%d" % (t2, t2))
    bf_round(t2, t2)
    A("v_sqrt_f32 v%d, v%d" % (t2, t2))
    A("s_nop 0")
    bf_round(t2, t2)
    A("v_rcp_f32 v%d, v%d" % (t3, t2))
    A("s_nop 0")
    for i in range(0, 10, 2):
        A("v_sub_f32 v%d, v%d, v%d" % (t4, f[i], t1))
        A("v_sub_f32 v%d, v%d, v%d" % (t5, f[i + 1], t1))
        A("v_cvt_pk_bf16_f32 v%d, v%d, v%d" % (t4, t4, t5))
        unpack(q[i], q[i + 1], t4)
    for i in range(10):
        A("v_mul_f32 v%d, v%d, v%d" % (t4, q[i], t3))
        A("v_fma_f32 v%d, -v%d, v%d, v%d" % (t5, t4, t2, q[i]))
        A("v_fma_f32 v%d, v%d, v%d, v%d" % (q[i], t5, t3, t4))
    for i in range(0, 10, 2):
        A("v_cvt_pk_bf16_f32 v%d, v%d, v%d" % (t4, q[i], q[i + 1]))
        unpack(q[i], q[i + 1], t4)


def k_lnx():
    name = "lnx_kernel"
    begin_kernel(name)
    A("s_cmp_ge_u32 s2, 512")
    A("s_cbranch_scc1 %s_done" % name)
    A("s_load_dwordx2 s[4:5], s[0:1], 0")
    A("s_load_dwordx2 s[6:7], s[0:1], 96")
    A("v_lshrrev_b32 v1, 6, v0")
    A("s_lshl_b32 s3, s2, 2")
    A("v_add_u32 v1, s3, v1")
    A("v_mul_u32_u24 v1, 1280, v1")
    A("v_and_b32 v2, 63, v0")
    A("v_lshl_add_u32 v1, v2, 2, v1")
    A("s_waitcnt lgkmcnt(0)")
    srd(8, 4, S * D * 2)
    srd(12, 6, S * D * 2, XL_OFF)
    for i in range(5):
        A("buffer_load_dword v%d, v1, s[8:11], 0 offen offset:%d" % (10 + i, i * 256))
    A("s_waitcnt vmcnt(0)")
    f = list(range(20, 30))
    q = list(range(30, 40))
    for i in range(5):
        unpack(f[2 * i], f[2 * i + 1], 10 + i)
    layernorm10(f, q, [40, 41, 42, 43, 44, 45], 20)
    for i in range(5):
        A("v_cvt_pk_bf16_f32 v%d, v%d, v%d" % (10 + i, q[2 * i], q[2 * i + 1]))
        A("buffer_store_dword v%d, v1, s[12:15], 0 offen offset:%d" % (10 + i, i * 256))
    L(name + "_done")
    end_kernel(name, 48)


def k_gemm(name, nwg, setup, pitchA, pitchB, pitchO, K, BN, RING, transposed):
    NT = BN // 16
    CHB = BN // 16
    CHA = 8
    NS = K // 128
    PF = RING - 1
    ASZ = 128 * 256
    BUFSZ = ASZ + BN * 256
    begin_kernel(name)
    A("s_cmp_ge_u32 s2, %d" % nwg)
    A("s_cbranch_scc1 %s_done" % name)
    A("v_and_b32 v1, 63, v0")
    A("v_and_b32 v2, 15, v0")
    A("v_lshrrev_b32 v3, 4, v1")
    A("v_lshrrev_b32 v4, 6, v0")
    A("s_nop 0")
    A("v_readfirstlane_b32 s23, v4")
    setup()
    A("s_lshl_b32 s26, s20, 7")
    A("s_lshl_b32 s27, s23, 5")
    A("s_add_u32 s26, s26, s27")
    if not transposed:
        A("v_add_u32 v5, s26, v2")
        A("s_mov_b32 s27, %d" % pitchO)
        A("v_mul_lo_u32 v8, v5, s27")
        A("s_mul_i32 s26, s21, %d" % (BN * 2))
        A("v_add_u32 v8, s26, v8")
        A("v_lshl_add_u32 v8, v3, 3, v8")
        A("v_add_u32 v9, %d, v8" % (16 * pitchO))
    else:
        A("s_mul_i32 s27, s21, %d" % BN)
        A("v_add_u32 v5, s27, v2")
        A("s_mov_b32 s27, %d" % pitchO)
        A("v_mul_lo_u32 v8, v5, s27")
        A("s_lshl_b32 s26, s26, 1")
        A("v_add_u32 v8, s26, v8")
        A("v_lshl_add_u32 v8, v3, 3, v8")
        A("v_add_u32 v9, 32, v8")
    vSA = 10
    vSB = vSA + CHA
    for (base, CH, rows_sgpr, rows_mul, pitch) in ((vSA, CHA, 20, 128, pitchA), (vSB, CHB, 21, BN, pitchB)):
        for j in range(CH):
            A("s_mul_i32 s26, s23, %d" % (CH * 4))
            A("s_add_u32 s26, s26, %d" % (4 * j))
            A("v_add_u32 v60, s26, v3")
            A("v_and_b32 v61, 15, v60")
            A("v_xor_b32 v61, v61, v2")
            A("s_mul_i32 s27, s%d, %d" % (rows_sgpr, rows_mul))
            A("v_add_u32 v60, s27, v60")
            A("s_mov_b32 s27, %d" % pitch)
            A("v_mul_lo_u32 v60, v60, s27")
            A("v_lshl_add_u32 v%d, v61, 4, v60" % (base + j))
    vL = vSB + CHB
    vLA = vL + 8
    A("s_lshl_b32 s26, s23, 13")
    for step in range(4):
        A("v_lshlrev_b32 v60, 1, v3")
        A("v_add_u32 v60, %d, v60" % ((step >> 1) * 8 + (step & 1)))
        A("v_xor_b32 v60, v60, v2")
        A("v_lshlrev_b32 v60, 4, v60")
        A("v_lshl_add_u32 v%d, v2, 8, v60" % (vL + step))
        A("v_add_u32 v%d, 0x10000, v%d" % (vL + 4 + step, vL + step))
        A("v_add_u32 v%d, s26, v%d" % (vLA + step, vL + step))
        A("v_add_u32 v%d, 0x10000, v%d" % (vLA + 4 + step, vLA + step))
    A("s_mul_i32 s28, s23, %d" % (CHA * 1024))
    A("s_mul_i32 s30, s23, %d" % (CHB * 1024))
    A("s_add_u32 s30, s30, %d" % ASZ)
    base = (vLA + 8 + 3) // 4 * 4
    vAcc = base
    vBf = vAcc + 2 * NT * 4
    vAf = vBf + 2 * NT * 4
    vend = vAf + 16
    assert vend <= 256, vend

    def acc(t, n):
        return vAcc + (t * NT + n) * 4

    def issue(stage):
        buf = stage % RING
        A("s_mov_b32 s29, %d" % (stage * 256))
        for j in range(CHA):
            A("s_add_u32 m0, s28, %d" % (buf * BUFSZ + j * 1024))
            A("s_nop 0")
            if "noa" not in VAR: A("buffer_load_dwordx4 v%d, s[8:11], s29 offen lds" % (vSA + j))
        for j in range(CHB):
            A("s_add_u32 m0, s30, %d" % (buf * BUFSZ + j * 1024))
            A("s_nop 0")
            if "nodma" not in VAR: A("buffer_load_dwordx4 v%d, s[12:15], s29 offen lds" % (vSB + j))

    def reads(stage, step, st):
        buf = stage % RING
        for t in range(2):
            r = vAf + (st * 2 + t) * 4
            off = buf * BUFSZ + t * 4096
            if "nods" not in VAR: A("ds_read_b128 v[%d:%d], v%d offset:%d" % (r, r + 3, vLA + step + (4 if off >= 65536 else 0), off & 65535))
        for n in range(NT):
            r = vBf + (st * NT + n) * 4
            off = buf * BUFSZ + ASZ + n * 4096
            hi = off >> 16
            assert hi <= 2
            if hi == 2:
                A("v_add_u32 v6, 0x10000, v%d" % (vL + 4 + step))
                if "nods" not in VAR: A("ds_read_b128 v[%d:%d], v6 offset:%d" % (r, r + 3, off & 65535))
            else:
                if "nods" not in VAR: A("ds_read_b128 v[%d:%d], v%d offset:%d" % (r, r + 3, vL + step + 4 * hi, off & 65535))

    def mfmas(stage, step, st):
        for t in range(2):
            for n in range(NT):
                a = acc(t, n)
                b = vBf + (st * NT + n) * 4
                r = vAf + (st * 2 + t) * 4
                x, y = (r, b) if transposed else (b, r)
                if "nomfma" not in VAR: A("v_mfma_f32_16x16x32_bf16 v[%d:%d], v[%d:%d], v[%d:%d], v[%d:%d]" % (
                    a, a + 3, x, x + 3, y, y + 3, a, a + 3))

    LPS = CHA + CHB
    for s in range(min(PF, NS)):
        issue(s)
    for i in range(2 * NT * 4):
        A("v_mov_b32 v%d, 0" % (vAcc + i))
    A("s_waitcnt vmcnt(%d)" % (LPS * (min(PF, NS) - 1)))
    A("s_barrier")
    st = 0
    reads(0, 0, st)
    for s in range(NS):
        if s + PF < NS:
            issue(s + PF)
        for step in range(4):
            if step < 3:
                reads(s, step + 1, st ^ 1)
                A("s_waitcnt lgkmcnt(%d)" % (NT + 2))
            elif s + 1 < NS:
                outst = LPS * (min(s + PF, NS - 1) - (s + 1))
                A("s_waitcnt vmcnt(%d) lgkmcnt(0)" % outst)
                A("s_barrier")
                reads(s + 1, 0, st ^ 1)
            else:
                A("s_waitcnt lgkmcnt(0)")
            mfmas(s, step, st)
            st ^= 1
    A("s_nop 7")
    A("s_nop 1")
    for t in range(2):
        for n in range(NT):
            a = acc(t, n)
            A("v_cvt_pk_bf16_f32 v%d, v%d, v%d" % (a, a, a + 1))
            A("v_cvt_pk_bf16_f32 v%d, v%d, v%d" % (a + 1, a + 2, a + 3))
            if not transposed:
                A("buffer_store_dwordx2 v[%d:%d], v%d, s[16:19], 0 offen offset:%d" % (a, a + 1, 8 + t, n * 32))
            else:
                A("s_mov_b32 s26, %d" % (n * 16 * pitchO))
                A("buffer_store_dwordx2 v[%d:%d], v%d, s[16:19], s26 offen" % (a, a + 1, 8 + t))
    L(name + "_done")
    end_kernel(name, vend)
    return RING * BUFSZ


def setup_g1():
    A("s_load_dwordx2 s[4:5], s[0:1], 24")
    A("s_load_dwordx2 s[6:7], s[0:1], 32")
    A("s_load_dwordx2 s[24:25], s[0:1], 96")
    A("s_and_b32 s20, s2, 15")
    A("s_lshr_b32 s26, s2, 4")
    A("s_and_b32 s21, s26, 7")
    A("s_lshr_b32 s22, s26, 3")
    A("s_waitcnt lgkmcnt(0)")
    A("s_cmp_eq_u32 s22, 0")
    A("s_cselect_b32 s4, s4, s6")
    A("s_cselect_b32 s5, s5, s7")
    srd(12, 4, D * D * 2)
    srd(8, 24, S * D * 2, XL_OFF if XL_OFF else None)
    A("s_mul_i32 s26, s22, 0x%x" % (D * S * 2))
    A("s_add_u32 s26, s26, 0x%x" % ABT_OFF)
    A("s_add_u32 s16, s24, s26")
    A("s_addc_u32 s17, s25, 0")
    A("s_mov_b32 s18, 0x%x" % (D * S * 2))
    A("s_mov_b32 s19, 0x00020000")


def setup_g2():
    A("s_load_dwordx2 s[4:5], s[0:1], 8")
    A("s_load_dwordx2 s[6:7], s[0:1], 16")
    A("s_load_dwordx2 s[24:25], s[0:1], 96")
    A("s_and_b32 s26, s2, 7")
    A("s_lshr_b32 s27, s2, 3")
    A("s_and_b32 s21, s27, 7")
    A("s_lshr_b32 s27, s27, 3")
    A("s_lshl_b32 s26, s26, 2")
    A("s_add_u32 s26, s26, s27")
    A("s_and_b32 s20, s26, 15")
    A("s_lshr_b32 s22, s26, 4")
    A("s_waitcnt lgkmcnt(0)")
    A("s_cmp_eq_u32 s22, 0")
    A("s_cselect_b32 s4, s4, s6")
    A("s_cselect_b32 s5, s5, s7")
    srd(8, 4, S * S * 2)
    A("s_mul_i32 s26, s22, 0x%x" % (D * S * 2))
    A("s_add_u32 s27, s26, 0x%x" % ABT_OFF)
    A("s_add_u32 s12, s24, s27")
    A("s_addc_u32 s13, s25, 0")
    A("s_mov_b32 s14, 0x%x" % (D * S * 2))
    A("s_mov_b32 s15, 0x00020000")
    A("s_add_u32 s27, s26, 0x%x" % Y_OFF)
    A("s_add_u32 s16, s24, s27")
    A("s_addc_u32 s17, s25, 0")
    A("s_mov_b32 s18, 0x%x" % (S * D * 2))
    A("s_mov_b32 s19, 0x00020000")


def k_ln2():
    name = "ln2_kernel"
    begin_kernel(name)
    A("s_cmp_ge_u32 s2, 512")
    A("s_cbranch_scc1 %s_done" % name)
    A("s_load_dwordx2 s[4:5], s[0:1], 0")
    A("s_load_dwordx2 s[6:7], s[0:1], 96")
    A("s_load_dwordx2 s[24:25], s[0:1], 48")
    A("s_load_dwordx2 s[26:27], s[0:1], 80")
    A("v_lshrrev_b32 v1, 6, v0")
    A("s_lshl_b32 s3, s2, 2")
    A("v_add_u32 v3, s3, v1")
    A("v_mul_u32_u24 v1, 1280, v3")
    A("v_and_b32 v2, 63, v0")
    A("v_lshl_add_u32 v1, v2, 2, v1")
    A("v_lshlrev_b32 v4, 2, v2")
    A("s_waitcnt lgkmcnt(0)")
    srd(8, 4, S * D * 2)
    srd(12, 6, WS_SIZE)
    srd(16, 24, D * 2)
    srd(28, 26, S * D * 2)
    A("s_mov_b32 s20, 0x%x" % Y_OFF)
    A("s_mov_b32 s21, 0x%x" % (Y_OFF + S * D * 2))
    for i in range(5):
        A("buffer_load_dword v%d, v1, s[8:11], 0 offen offset:%d" % (10 + i, i * 256))
        A("buffer_load_dword v%d, v1, s[12:15], s20 offen offset:%d" % (15 + i, i * 256))
        A("buffer_load_dword v%d, v1, s[12:15], s21 offen offset:%d" % (50 + i, i * 256))
        A("buffer_load_dword v%d, v4, s[16:19], 0 offen offset:%d" % (55 + i, i * 256))
    A("s_waitcnt vmcnt(0)")
    f = list(range(20, 30))
    q = list(range(30, 40))
    for i in range(5):
        unpack(60, 61, 15 + i)
        unpack(62, 63, 50 + i)
        A("v_sub_f32 v60, v60, v62")
        A("v_sub_f32 v61, v61, v63")
        A("v_cvt_pk_bf16_f32 v62, v60, v61")
        unpack(60, 61, 62)
        unpack(62, 63, 10 + i)
        A("v_add_f32 v60, v60, v62")
        A("v_add_f32 v61, v61, v63")
        A("v_cvt_pk_bf16_f32 v%d, v60, v61" % (15 + i))
        unpack(f[2 * i], f[2 * i + 1], 15 + i)
    layernorm10(f, q, [40, 41, 42, 43, 44, 45], 20)
    A("v_mov_b32 v40, 0")
    for i in range(5):
        unpack(60, 61, 55 + i)
        A("v_fmac_f32 v40, v60, v%d" % q[2 * i])
        A("v_fmac_f32 v40, v61, v%d" % q[2 * i + 1])
    wave_reduce("add_f32", 40, 20)
    A("v_mov_b32 v40, s20")
    A("v_cvt_pk_bf16_f32 v40, v40, v40")
    A("s_mov_b32 s20, 0x%x" % H_OFF)
    A("s_mov_b32 s21, 0x%x" % HL_OFF)
    for i in range(5):
        A("v_cvt_pk_bf16_f32 v%d, v%d, v%d" % (50 + i, q[2 * i], q[2 * i + 1]))
        A("v_add_f32 v60, v%d, v%d" % (f[2 * i], q[2 * i]))
        A("v_add_f32 v61, v%d, v%d" % (f[2 * i + 1], q[2 * i + 1]))
        A("v_cvt_pk_bf16_f32 v%d, v60, v61" % (10 + i))
        A("buffer_store_dword v%d, v1, s[28:31], 0 offen offset:%d" % (10 + i, i * 256))
        A("buffer_store_dword v%d, v1, s[12:15], s20 offen offset:%d" % (15 + i, i * 256))
        A("buffer_store_dword v%d, v1, s[12:15], s21 offen offset:%d" % (50 + i, i * 256))
    A("v_lshlrev_b32 v3, 1, v3")
    A("s_mov_b32 s20, 0x%x" % R_OFF)
    A("v_cmp_eq_u32 vcc, 0, v2")
    A("s_and_saveexec_b64 s[22:23], vcc")
    A("buffer_store_short v40, v3, s[12:15], s20 offen")
    L(name + "_done")
    end_kernel(name, 64)


def k_ffn1():
    name = "ffn1_kernel"
    begin_kernel(name)
    A("s_cmp_ge_u32 s2, 96")
    A("s_cbranch_scc1 %s_done" % name)
    A("s_load_dwordx2 s[4:5], s[0:1], 56")
    A("s_load_dwordx2 s[6:7], s[0:1], 64")
    A("s_load_dwordx2 s[24:25], s[0:1], 96")
    A("v_and_b32 v1, 63, v0")
    A("v_and_b32 v2, 15, v0")
    A("v_lshrrev_b32 v3, 4, v1")
    A("v_lshrrev_b32 v4, 6, v0")
    A("s_waitcnt lgkmcnt(0)")
    srd(8, 4, D * F * 2)
    srd(12, 6, D * F * 2)
    srd(16, 24, WS_SIZE)
    A("v_lshlrev_b32 v5, 4, v0")
    A("s_mov_b32 s20, 0x%x" % R_OFF)
    A("buffer_load_dwordx4 v[8:11], v5, s[16:19], s20 offen")
    A("v_mul_u32_u24 v5, 160, v4")
    A("v_lshl_add_u32 v5, v3, 3, v5")
    A("v_mul_u32_u24 v5, 3072, v5")
    A("s_lshl_b32 s20, s2, 4")
    A("v_add_u32 v6, s20, v2")
    A("v_lshl_add_u32 v5, v6, 1, v5")
    vG, vU = 64, 84
    rG, rU = 128, 168
    for step in range(5):
        for j in range(8):
            A("s_mov_b32 s20, %d" % ((step * 32 + j) * 3072))
            A("buffer_load_ushort v%d, v5, s[8:11], s20 offen" % (rG + step * 8 + j))
            A("buffer_load_ushort v%d, v5, s[12:15], s20 offen" % (rU + step * 8 + j))
    A("s_waitcnt vmcnt(63)")
    A("s_nop 0")
    A("s_waitcnt vmcnt(40)")
    A("s_waitcnt vmcnt(80)") if False else None
    A("s_mov_b32 s21, 0x7fff")
    A("v_lshlrev_b32 v6, 3, v0")
    A("v_sub_u32 v6, 2047, v6")
    A("s_waitcnt vmcnt(0)")
    for i in range(20):
        A("v_lshl_or_b32 v%d, v%d, 16, v%d" % (vG + i, rG + 2 * i + 1, rG + 2 * i))
        A("v_lshl_or_b32 v%d, v%d, 16, v%d" % (vU + i, rU + 2 * i + 1, rU + 2 * i))
    for i in range(8):
        d = 8 + i // 2
        if i & 1:
            A("v_lshrrev_b32 v20, 16, v%d" % d)
        else:
            A("v_and_b32 v20, 0xffff, v%d" % d)
        A("v_bfe_i32 v21, v20, 15, 1")
        A("v_and_b32 v21, s21, v21")
        A("v_or_b32 v21, 0x8000, v21")
        A("v_xor_b32 v20, v20, v21")
        A("v_subrev_u32 v21, %d, v6" % i)
        A("v_lshl_or_b32 v%d, v20, 11, v21" % (24 + i))
    for rnd in range(8):
        A("v_max3_u32 v20, v24, v25, v26")
        A("v_max3_u32 v20, v20, v27, v28")
        A("v_max3_u32 v20, v20, v29, v30")
        A("v_max_u32 v20, v20, v31")
        wave_reduce("max_u32", 20, 20)
        A("v_mov_b32 v20, s20")
        A("v_lshlrev_b32 v21, 2, v4")
        A("ds_write_b32 v21, v20 offset:%d" % (rnd * 16))
        A("s_waitcnt lgkmcnt(0)")
        A("s_barrier")
        A("v_mov_b32 v21, 0")
        A("ds_read_b128 v[32:35], v21 offset:%d" % (rnd * 16))
        A("s_waitcnt lgkmcnt(0)")
        A("v_max3_u32 v20, v32, v33, v34")
        A("v_max_u32 v20, v20, v35")
        for i in range(8):
            A("v_cmp_eq_u32 vcc, v20, v%d" % (24 + i))
            A("s_nop 1")
            A("v_cndmask_b32 v%d, v%d, 0, vcc" % (24 + i, 24 + i)) if False else None
            A("v_cndmask_b32_e64 v%d, v%d, 0, vcc" % (24 + i, 24 + i))
        A("v_and_b32 v21, 2047, v20")
        A("v_sub_u32 v21, 2047, v21")
        A("s_nop 0")
        A("v_readfirstlane_b32 s%d, v21" % (40 + rnd))
    A("v_and_b32 v20, 7, v1")
    A("v_mov_b32 v21, s40")
    for j in range(1, 8):
        A("v_cmp_eq_u32 vcc, %d, v20" % j)
        A("v_mov_b32 v22, s%d" % (40 + j))
        A("s_nop 0")
        A("v_cndmask_b32 v21, v21, v22, vcc")
    A("v_mul_u32_u24 v21, 1280, v21")
    A("v_mul_u32_u24 v22, 320, v4")
    A("v_add_u32 v21, v21, v22")
    A("v_lshl_add_u32 v21, v3, 4, v21")
    A("s_mov_b32 s20, 0x%x" % HL_OFF)
    vX = 104
    for step in range(5):
        A("buffer_load_dwordx4 v[%d:%d], v21, s[16:19], s20 offen offset:%d" % (vX + step * 4, vX + step * 4 + 3, step * 64))
    for i in range(8):
        A("v_mov_b32 v%d, 0" % (40 + i))
    A("s_waitcnt vmcnt(0)")
    for step in range(5):
        x = vX + step * 4
        A("v_mfma_f32_16x16x32_bf16 v[40:43], v[%d:%d], v[%d:%d], v[40:43]" % (x, x + 3, vG + step * 4, vG + step * 4 + 3))
        A("v_mfma_f32_16x16x32_bf16 v[44:47], v[%d:%d], v[%d:%d], v[44:47]" % (x, x + 3, vU + step * 4, vU + step * 4 + 3))
    A("s_nop 7")
    A("s_nop 1")
    A("v_lshlrev_b32 v20, 4, v1")
    A("v_lshl_add_u32 v20, v4, 11, v20")
    A("ds_write_b128 v20, v[40:43] offset:256")
    A("ds_write_b128 v20, v[44:47] offset:1280")
    A("s_waitcnt lgkmcnt(0)")
    A("s_barrier")
    A("v_cmp_gt_u32 vcc, 32, v0")
    A("s_and_saveexec_b64 s[22:23], vcc")
    A("s_cbranch_execz %s_done" % name)
    A("v_lshlrev_b32 v20, 4, v1")
    for w in range(1, 4):
        A("ds_read_b128 v[48:51], v20 offset:%d" % (256 + w * 2048))
        A("ds_read_b128 v[52:55], v20 offset:%d" % (1280 + w * 2048))
        A("s_waitcnt lgkmcnt(0)")
        for i in range(8):
            A("v_add_f32 v%d, v%d, v%d" % (40 + i, 40 + i, 48 + i))
    A("s_mov_b32 s20, 0x%x" % T_OFF)
    A("s_lshl_b32 s21, s2, 4")
    A("v_add_u32 v21, s21, v2")
    A("v_lshlrev_b32 v21, 1, v21")
    A("v_mul_u32_u24 v22, %d, v3" % (4 * 3072))
    A("v_add_u32 v21, v21, v22")
    for r in range(4):
        bf_round(40 + r, 40 + r)
        bf_round(44 + r, 44 + r)
        A("v_mul_f32 v48, 0xbfb8aa3b, v%d" % (40 + r))
        A("v_exp_f32 v48, v48")
        A("s_nop 0")
        A("v_add_f32 v48, 1.0, v48")
        A("v_rcp_f32 v48, v48")
        A("s_nop 0")
        A("v_mul_f32 v48, v48, v%d" % (40 + r))
        bf_round(48, 48)
        A("v_mul_f32 v48, v48, v%d" % (44 + r))
        A("v_cvt_pk_bf16_f32 v48, v48, v48")
        A("buffer_store_short v48, v21, s[16:19], s20 offen")
        A("v_add_u32 v21, 3072, v21")
    A("s_cmp_lg_u32 s2, 0")
    A("s_cbranch_scc1 %s_done" % name)
    A("v_cmp_eq_u32 vcc, 0, v0")
    A("s_and_saveexec_b64 s[22:23], vcc")
    for j in range(8):
        A("v_mov_b32 v%d, s%d" % (40 + j, 40 + j))
    A("v_mov_b32 v20, 0")
    A("s_mov_b32 s20, 0x%x" % IDX_OFF)
    A("buffer_store_dwordx4 v[40:43], v20, s[16:19], s20 offen")
    A("buffer_store_dwordx4 v[44:47], v20, s[16:19], s20 offen offset:16")
    L(name + "_done")
    end_kernel(name, 208)


def k_ffn2():
    name = "ffn2_kernel"
    begin_kernel(name)
    A("s_cmp_ge_u32 s2, 40")
    A("s_cbranch_scc1 %s_done" % name)
    A("s_load_dwordx2 s[4:5], s[0:1], 72")
    A("s_load_dwordx2 s[6:7], s[0:1], 80")
    A("s_load_dwordx2 s[24:25], s[0:1], 96")
    A("v_and_b32 v1, 63, v0")
    A("v_and_b32 v2, 15, v0")
    A("v_lshrrev_b32 v3, 4, v1")
    A("v_lshrrev_b32 v4, 6, v0")
    A("s_waitcnt lgkmcnt(0)")
    srd(8, 4, D * F * 2)
    srd(12, 6, S * D * 2)
    srd(16, 24, WS_SIZE)
    A("s_add_u32 s26, s24, 0x%x" % IDX_OFF)
    A("s_addc_u32 s27, s25, 0")
    A("s_load_dwordx8 s[40:47], s[26:27], 0")
    A("v_mul_u32_u24 v5, 384, v4")
    A("v_lshl_add_u32 v5, v3, 3, v5")
    A("v_mul_u32_u24 v5, 1280, v5")
    A("s_lshl_b32 s20, s2, 4")
    A("v_add_u32 v6, s20, v2")
    A("v_lshl_add_u32 v5, v6, 1, v5")
    vW = 64
    rW = 160
    for step in range(12):
        for j in range(8):
            A("s_mov_b32 s20, %d" % ((step * 32 + j) * 1280))
            A("buffer_load_ushort v%d, v5, s[8:11], s20 offen" % (rW + step * 8 + j))
    A("v_and_b32 v20, 7, v1")
    A("v_mul_u32_u24 v20, 3072, v20")
    A("v_mul_u32_u24 v21, 768, v4")
    A("v_add_u32 v20, v20, v21")
    A("v_lshl_add_u32 v20, v3, 4, v20")
    A("s_mov_b32 s20, 0x%x" % T_OFF)
    vX = 112
    for step in range(12):
        A("buffer_load_dwordx4 v[%d:%d], v20, s[16:19], s20 offen offset:%d" % (vX + step * 4, vX + step * 4 + 3, step * 64))
    for i in range(4):
        A("v_mov_b32 v%d, 0" % (40 + i))
    A("s_waitcnt vmcnt(0)")
    for i in range(48):
        A("v_lshl_or_b32 v%d, v%d, 16, v%d" % (vW + i, rW + 2 * i + 1, rW + 2 * i))
    A("s_nop 1")
    for step in range(12):
        x = vX + step * 4
        A("v_mfma_f32_16x16x32_bf16 v[40:43], v[%d:%d], v[%d:%d], v[40:43]" % (x, x + 3, vW + step * 4, vW + step * 4 + 3))
    A("s_nop 7")
    A("s_nop 1")
    A("v_lshlrev_b32 v20, 4, v1")
    A("v_lshl_add_u32 v20, v4, 10, v20")
    A("ds_write_b128 v20, v[40:43]")
    A("s_waitcnt lgkmcnt(0)")
    A("s_barrier")
    A("v_cmp_gt_u32 vcc, 32, v0")
    A("s_and_saveexec_b64 s[22:23], vcc")
    A("s_cbranch_execz %s_done" % name)
    A("v_lshlrev_b32 v20, 4, v1")
    for w in range(1, 4):
        A("ds_read_b128 v[48:51], v20 offset:%d" % (w * 1024))
        A("s_waitcnt lgkmcnt(0)")
        for i in range(4):
            A("v_add_f32 v%d, v%d, v%d" % (40 + i, 40 + i, 48 + i))
    A("v_cmp_eq_u32 vcc, 1, v3")
    A("s_mov_b32 s20, 0x%x" % R_OFF)
    A("s_mov_b32 s21, 0x%x" % H_OFF)
    A("s_mov_b32 s28, 0x%x" % HL_OFF)
    for r in range(4):
        A("v_mov_b32 v20, s%d" % (40 + r))
        A("v_mov_b32 v21, s%d" % (44 + r))
        A("v_cndmask_b32 v20, v20, v21, vcc")
        A("v_lshlrev_b32 v21, 1, v20")
        A("buffer_load_ushort v%d, v21, s[16:19], s20 offen" % (52 + r))
        A("v_mul_u32_u24 v20, 1280, v20")
        A("v_lshl_add_u32 v%d, v6, 1, v20" % (56 + r))
        A("buffer_load_ushort v%d, v%d, s[16:19], s21 offen" % (60 + r, 56 + r))
        A("buffer_load_ushort v%d, v%d, s[16:19], s28 offen" % (48 + r, 56 + r))
    A("s_waitcnt vmcnt(0)")
    for r in range(4):
        bf_round(40 + r, 40 + r)
        A("v_lshlrev_b32 v20, 16, v%d" % (52 + r))
        A("v_mul_f32 v20, 0xbfb8aa3b, v20")
        A("v_exp_f32 v20, v20")
        A("s_nop 0")
        A("v_add_f32 v20, 1.0, v20")
        A("v_rcp_f32 v20, v20")
        A("s_nop 0")
        bf_round(20, 20)
        A("v_mul_f32 v20, v20, v%d" % (40 + r))
        bf_round(20, 20)
        A("v_lshlrev_b32 v21, 16, v%d" % (48 + r))
        A("v_add_f32 v20, v20, v21")
        bf_round(20, 20)
        A("v_lshlrev_b32 v21, 16, v%d" % (60 + r))
        A("v_add_f32 v20, v20, v21")
        A("v_cvt_pk_bf16_f32 v20, v20, v20")
        A("buffer_store_short v20, v%d, s[12:15], 0 offen" % (56 + r))
    L(name + "_done")
    end_kernel(name, 256)


def main():
    hdr = open("cdna_kernels/%s.s.ref" % NAME).read().split("; @launch")[0]
    body_start = len(out)
    out.append('.amdgcn_target "amdgcn-amd-amdhsa--gfx950"')
    out.append(".text")
    k_lnx()
    lds1 = k_gemm("g1_kernel", 256, setup_g1, 1280, 1280, 4096, 640, 80, 3, True)
    lds2 = k_gemm("g2_kernel", 256, setup_g2, 4096, 4096, 1280, 2048, 80, 3, False)
    k_ln2()
    k_ffn1()
    k_ffn2()
    launches = [
        "; @launch kernel=lnx_kernel grid=(512,1,1) block=(256,1,1) lds=0",
        "; @launch kernel=g1_kernel grid=(256,1,1) block=(256,1,1) lds=%d" % lds1,
        "; @launch kernel=g2_kernel grid=(256,1,1) block=(256,1,1) lds=%d" % lds2,
        "; @launch kernel=ln2_kernel grid=(512,1,1) block=(256,1,1) lds=0",
        "; @launch kernel=ffn1_kernel grid=(96,1,1) block=(256,1,1) lds=8448",
        "; @launch kernel=ffn2_kernel grid=(40,1,1) block=(256,1,1) lds=4096",
    ]
    txt = hdr + "\n".join(launches) + "\n" + "\n".join(out) + "\n"
    txt += '.section .rodata,"a"\n'
    for name, vgpr, sgpr in kds:
        acc = (vgpr + 3) // 4 * 4
        txt += ".p2align 6\n.amdhsa_kernel %s\n" % name
        txt += "  .amdhsa_next_free_vgpr %d\n  .amdhsa_next_free_sgpr %d\n  .amdhsa_accum_offset %d\n" % (vgpr, sgpr, acc)
        txt += "  .amdhsa_group_segment_fixed_size 0\n  .amdhsa_kernarg_size 104\n  .amdhsa_user_sgpr_count 2\n"
        txt += "  .amdhsa_user_sgpr_kernarg_segment_ptr 1\n  .amdhsa_system_sgpr_workgroup_id_x 1\n.end_amdhsa_kernel\n"
    dst = sys.argv[1] if len(sys.argv) > 1 else "cdna_kernels/%s.s" % NAME
    open(dst, "w").write(txt)


main()
```

```python
import sys, os
VAR = os.environ.get("VAR", "")

NAME = "sequential_preLN__spectral_fnet__moe_arch_mod__prompt"
S, D, F = 2048, 640, 1536
MB = 1 << 20
XL_OFF = 0
ABT_OFF = 4 * MB
Y_OFF = 12 * MB
H_OFF = 20 * MB
HL_OFF = 24 * MB
R_OFF = 28 * MB
IDX_OFF = R_OFF + 8192
T_OFF = R_OFF + 16384
WS_SIZE = 32 * MB

out = []


def A(s):
    out.append("    " + s)


def L(s):
    out.append(s + ":")


def begin_kernel(name):
    out.append(".globl %s" % name)
    out.append(".p2align 8")
    out.append(".type %s,@function" % name)
    out.append("%s:" % name)


kds = []


def end_kernel(name, vgpr, sgpr=102):
    A("s_endpgm")
    kds.append((name, vgpr, sgpr))


def srd(d, lo, nbytes, add=None):
    if add:
        A("s_add_u32 s%d, s%d, 0x%x" % (d, lo, add))
        A("s_addc_u32 s%d, s%d, 0" % (d + 1, lo + 1))
    else:
        A("s_mov_b32 s%d, s%d" % (d, lo))
        A("s_mov_b32 s%d, s%d" % (d + 1, lo + 1))
    A("s_mov_b32 s%d, 0x%x" % (d + 2, nbytes))
    A("s_mov_b32 s%d, 0x00020000" % (d + 3))


def wave_reduce(op, v, sdst):
    for m in ["quad_perm:[1,0,3,2] row_mask:0xf bank_mask:0xf",
              "quad_perm:[2,3,0,1] row_mask:0xf bank_mask:0xf",
              "row_half_mirror row_mask:0xf bank_mask:0xf",
              "row_mirror row_mask:0xf bank_mask:0xf",
              "row_bcast:15 row_mask:0xa bank_mask:0xf",
              "row_bcast:31 row_mask:0xc bank_mask:0xf"]:
        A("s_nop 1")
        A("v_%s_dpp v%d, v%d, v%d %s" % (op, v, v, v, m))
    A("s_nop 0")
    A("v_readlane_b32 s%d, v%d, 63" % (sdst, v))
    A("s_nop 1")


def bf_round(vd, vs):
    A("v_cvt_pk_bf16_f32 v%d, v%d, v%d" % (vd, vs, vs))
    A("v_lshlrev_b32 v%d, 16, v%d" % (vd, vd))


def unpack(vlo, vhi, vs):
    A("v_lshlrev_b32 v%d, 16, v%d" % (vlo, vs))
    A("v_and_b32 v%d, 0xffff0000, v%d" % (vhi, vs))


def layernorm10(f, q, t, sA):
    t0, t1, t2, t3, t4, t5 = t
    A("v_add_f32 v%d, v%d, v%d" % (t0, f[0], f[1]))
    for i in range(2, 10):
        A("v_add_f32 v%d, v%d, v%d" % (t0, t0, f[i]))
    wave_reduce("add_f32", t0, sA)
    A("v_mov_b32 v%d, s%d" % (t1, sA))
    A("v_mul_f32 v%d, 0x3acccccd, v%d" % (t1, t1))
    A("v_mov_b32 v%d, 0" % t2)
    for i in range(10):
        A("v_sub_f32 v%d, v%d, v%d" % (t3, f[i], t1))
        A("v_fmac_f32 v%d, v%d, v%d" % (t2, t3, t3))
    wave_reduce("add_f32", t2, sA)
    A("v_mov_b32 v%d, s%d" % (t2, sA))
    A("v_mul_f32 v%d, 0x3acccccd, v%d" % (t2, t2))
    bf_round(t1, t1)
    bf_round(t2, t2)
    A("v_add_f32 v%d, 0x3727c5ac, v%d" % (t2, t2))
    bf_round(t2, t2)
    A("v_sqrt_f32 v%d, v%d" % (t2, t2))
    A("s_nop 0")
    bf_round(t2, t2)
    A("v_rcp_f32 v%d, v%d" % (t3, t2))
    A("s_nop 0")
    for i in range(0, 10, 2):
        A("v_sub_f32 v%d, v%d, v%d" % (t4, f[i], t1))
        A("v_sub_f32 v%d, v%d, v%d" % (t5, f[i + 1], t1))
        A("v_cvt_pk_bf16_f32 v%d, v%d, v%d" % (t4, t4, t5))
        unpack(q[i], q[i + 1], t4)
    for i in range(10):
        A("v_mul_f32 v%d, v%d, v%d" % (t4, q[i], t3))
        A("v_fma_f32 v%d, -v%d, v%d, v%d" % (t5, t4, t2, q[i]))
        A("v_fma_f32 v%d, v%d, v%d, v%d" % (q[i], t5, t3, t4))
    for i in range(0, 10, 2):
        A("v_cvt_pk_bf16_f32 v%d, v%d, v%d" % (t4, q[i], q[i + 1]))
        unpack(q[i], q[i + 1], t4)


def k_lnx():
    name = "lnx_kernel"
    begin_kernel(name)
    A("s_cmp_ge_u32 s2, 512")
    A("s_cbranch_scc1 %s_done" % name)
    A("s_load_dwordx2 s[4:5], s[0:1], 0")
    A("s_load_dwordx2 s[6:7], s[0:1], 96")
    A("v_lshrrev_b32 v1, 6, v0")
    A("s_lshl_b32 s3, s2, 2")
    A("v_add_u32 v1, s3, v1")
    A("v_mul_u32_u24 v1, 1280, v1")
    A("v_and_b32 v2, 63, v0")
    A("v_lshl_add_u32 v1, v2, 2, v1")
    A("s_waitcnt lgkmcnt(0)")
    srd(8, 4, S * D * 2)
    srd(12, 6, S * D * 2, XL_OFF)
    for i in range(5):
        A("buffer_load_dword v%d, v1, s[8:11], 0 offen offset:%d" % (10 + i, i * 256))
    A("s_waitcnt vmcnt(0)")
    f = list(range(20, 30))
    q = list(range(30, 40))
    for i in range(5):
        unpack(f[2 * i], f[2 * i + 1], 10 + i)
    layernorm10(f, q, [40, 41, 42, 43, 44, 45], 20)
    for i in range(5):
        A("v_cvt_pk_bf16_f32 v%d, v%d, v%d" % (10 + i, q[2 * i], q[2 * i + 1]))
        A("buffer_store_dword v%d, v1, s[12:15], 0 offen offset:%d" % (10 + i, i * 256))
    L(name + "_done")
    end_kernel(name, 48)


def k_gemm(name, nwg, setup, pitchA, pitchB, pitchO, K, BN, RING, transposed):
    NT = BN // 16
    CHB = BN // 16
    CHA = 8
    NS = K // 128
    PF = RING - 1
    ASZ = 128 * 256
    BUFSZ = ASZ + BN * 256
    begin_kernel(name)
    A("s_cmp_ge_u32 s2, %d" % nwg)
    A("s_cbranch_scc1 %s_done" % name)
    A("v_and_b32 v1, 63, v0")
    A("v_and_b32 v2, 15, v0")
    A("v_lshrrev_b32 v3, 4, v1")
    A("v_lshrrev_b32 v4, 6, v0")
    A("s_nop 0")
    A("v_readfirstlane_b32 s23, v4")
    setup()
    A("s_lshl_b32 s26, s20, 7")
    A("s_lshl_b32 s27, s23, 5")
    A("s_add_u32 s26, s26, s27")
    if not transposed:
        A("v_add_u32 v5, s26, v2")
        A("s_mov_b32 s27, %d" % pitchO)
        A("v_mul_lo_u32 v8, v5, s27")
        A("s_mul_i32 s26, s21, %d" % (BN * 2))
        A("v_add_u32 v8, s26, v8")
        A("v_lshl_add_u32 v8, v3, 3, v8")
        A("v_add_u32 v9, %d, v8" % (16 * pitchO))
    else:
        A("s_mul_i32 s27, s21, %d" % BN)
        A("v_add_u32 v5, s27, v2")
        A("s_mov_b32 s27, %d" % pitchO)
        A("v_mul_lo_u32 v8, v5, s27")
        A("s_lshl_b32 s26, s26, 1")
        A("v_add_u32 v8, s26, v8")
        A("v_lshl_add_u32 v8, v3, 3, v8")
        A("v_add_u32 v9, 32, v8")
    vSA = 10
    vSB = vSA + CHA
    for (base, CH, rows_sgpr, rows_mul, pitch) in ((vSA, CHA, 20, 128, pitchA), (vSB, CHB, 21, BN, pitchB)):
        for j in range(CH):
            A("s_mul_i32 s26, s23, %d" % (CH * 4))
            A("s_add_u32 s26, s26, %d" % (4 * j))
            A("v_add_u32 v60, s26, v3")
            A("v_and_b32 v61, 15, v60")
            A("v_xor_b32 v61, v61, v2")
            A("s_mul_i32 s27, s%d, %d" % (rows_sgpr, rows_mul))
            A("v_add_u32 v60, s27, v60")
            A("s_mov_b32 s27, %d" % pitch)
            A("v_mul_lo_u32 v60, v60, s27")
            A("v_lshl_add_u32 v%d, v61, 4, v60" % (base + j))
    vL = vSB + CHB
    vLA = vL + 8
    A("s_lshl_b32 s26, s23, 13")
    for step in range(4):
        A("v_lshlrev_b32 v60, 1, v3")
        A("v_add_u32 v60, %d, v60" % ((step >> 1) * 8 + (step & 1)))
        A("v_xor_b32 v60, v60, v2")
        A("v_lshlrev_b32 v60, 4, v60")
        A("v_lshl_add_u32 v%d, v2, 8, v60" % (vL + step))
        A("v_add_u32 v%d, 0x10000, v%d" % (vL + 4 + step, vL + step))
        A("v_add_u32 v%d, s26, v%d" % (vLA + step, vL + step))
        A("v_add_u32 v%d, 0x10000, v%d" % (vLA + 4 + step, vLA + step))
    A("s_mul_i32 s28, s23, %d" % (CHA * 1024))
    A("s_mul_i32 s30, s23, %d" % (CHB * 1024))
    A("s_add_u32 s30, s30, %d" % ASZ)
    base = (vLA + 8 + 3) // 4 * 4
    vAcc = base
    vBf = vAcc + 2 * NT * 4
    vAf = vBf + 2 * NT * 4
    vend = vAf + 16
    assert vend <= 256, vend

    def acc(t, n):
        return vAcc + (t * NT + n) * 4

    def issue(stage):
        buf = stage % RING
        for j in range(CHA):
            A("s_add_u32 m0, s28, %d" % (buf * BUFSZ + j * 1024))
            A("s_nop 0")
            if "noa" not in VAR: A("buffer_load_dwordx4 v%d, s[8:11], s29 offen lds" % (vSA + j))
        for j in range(CHB):
            A("s_add_u32 m0, s30, %d" % (buf * BUFSZ + j * 1024))
            A("s_nop 0")
            if "nodma" not in VAR: A("buffer_load_dwordx4 v%d, s[12:15], s29 offen lds" % (vSB + j))

    def reads(stage, step, st):
        buf = stage % RING
        for t in range(2):
            r = vAf + (st * 2 + t) * 4
            off = buf * BUFSZ + t * 4096
            if "nods" not in VAR: A("ds_read_b128 v[%d:%d], v%d offset:%d" % (r, r + 3, vLA + step + (4 if off >= 65536 else 0), off & 65535))
        for n in range(NT):
            r = vBf + (st * NT + n) * 4
            off = buf * BUFSZ + ASZ + n * 4096
            hi = off >> 16
            assert hi <= 2
            if hi == 2:
                A("v_add_u32 v6, 0x10000, v%d" % (vL + 4 + step))
                if "nods" not in VAR: A("ds_read_b128 v[%d:%d], v6 offset:%d" % (r, r + 3, off & 65535))
            else:
                if "nods" not in VAR: A("ds_read_b128 v[%d:%d], v%d offset:%d" % (r, r + 3, vL + step + 4 * hi, off & 65535))

    def mfmas(stage, step, st):
        for t in range(2):
            for n in range(NT):
                a = acc(t, n)
                b = vBf + (st * NT + n) * 4
                r = vAf + (st * 2 + t) * 4
                x, y = (r, b) if transposed else (b, r)
                if "nomfma" not in VAR: A("v_mfma_f32_16x16x32_bf16 v[%d:%d], v[%d:%d], v[%d:%d], v[%d:%d]" % (
                    a, a + 3, x, x + 3, y, y + 3, a, a + 3))

    LPS = CHA + CHB
    A("s_mov_b32 s29, 0")
    for s in range(PF):
        issue(s)
        A("s_add_u32 s29, s29, 256")
    A("s_mov_b32 s31, %d" % NS)
    for i in range(2 * NT * 4):
        A("v_mov_b32 v%d, 0" % (vAcc + i))
    A("s_waitcnt vmcnt(%d)" % (LPS * (PF - 1)))
    A("s_barrier")
    st = 0
    reads(0, 0, st)
    L(name + "_loop")
    for s in range(RING):
        issue(s + PF)
        A("s_add_u32 s29, s29, 256")
        for step in range(4):
            if step < 3:
                reads(s, step + 1, st ^ 1)
                A("s_waitcnt lgkmcnt(%d)" % (NT + 2))
            else:
                A("s_waitcnt vmcnt(%d) lgkmcnt(0)" % (LPS * (PF - 1)))
                A("s_barrier")
                reads(s + 1, 0, st ^ 1)
            mfmas(s, step, st)
            st ^= 1
        A("s_sub_u32 s31, s31, 1")
        A("s_cmp_eq_u32 s31, 0")
        if s < RING - 1:
            A("s_cbranch_scc1 %s_exit" % name)
        else:
            A("s_cbranch_scc0 %s_loop" % name)
    L(name + "_exit")
    A("s_waitcnt vmcnt(0) lgkmcnt(0)")
    A("s_nop 7")
    A("s_nop 1")
    for t in range(2):
        for n in range(NT):
            a = acc(t, n)
            A("v_cvt_pk_bf16_f32 v%d, v%d, v%d" % (a, a, a + 1))
            A("v_cvt_pk_bf16_f32 v%d, v%d, v%d" % (a + 1, a + 2, a + 3))
            if not transposed:
                A("buffer_store_dwordx2 v[%d:%d], v%d, s[16:19], 0 offen offset:%d" % (a, a + 1, 8 + t, n * 32))
            else:
                A("s_mov_b32 s26, %d" % (n * 16 * pitchO))
                A("buffer_store_dwordx2 v[%d:%d], v%d, s[16:19], s26 offen" % (a, a + 1, 8 + t))
    L(name + "_done")
    end_kernel(name, vend)
    return RING * BUFSZ


def setup_g1():
    A("s_load_dwordx2 s[4:5], s[0:1], 24")
    A("s_load_dwordx2 s[6:7], s[0:1], 32")
    A("s_load_dwordx2 s[24:25], s[0:1], 96")
    A("s_and_b32 s20, s2, 15")
    A("s_lshr_b32 s26, s2, 4")
    A("s_and_b32 s21, s26, 7")
    A("s_lshr_b32 s22, s26, 3")
    A("s_waitcnt lgkmcnt(0)")
    A("s_cmp_eq_u32 s22, 0")
    A("s_cselect_b32 s4, s4, s6")
    A("s_cselect_b32 s5, s5, s7")
    srd(12, 4, D * D * 2)
    srd(8, 24, S * D * 2, XL_OFF if XL_OFF else None)
    A("s_mul_i32 s26, s22, 0x%x" % (D * S * 2))
    A("s_add_u32 s26, s26, 0x%x" % ABT_OFF)
    A("s_add_u32 s16, s24, s26")
    A("s_addc_u32 s17, s25, 0")
    A("s_mov_b32 s18, 0x%x" % (D * S * 2))
    A("s_mov_b32 s19, 0x00020000")


def setup_g2():
    A("s_load_dwordx2 s[4:5], s[0:1], 8")
    A("s_load_dwordx2 s[6:7], s[0:1], 16")
    A("s_load_dwordx2 s[24:25], s[0:1], 96")
    A("s_and_b32 s26, s2, 7")
    A("s_lshr_b32 s27, s2, 3")
    A("s_and_b32 s21, s27, 7")
    A("s_lshr_b32 s27, s27, 3")
    A("s_lshl_b32 s26, s26, 2")
    A("s_add_u32 s26, s26, s27")
    A("s_and_b32 s20, s26, 15")
    A("s_lshr_b32 s22, s26, 4")
    A("s_waitcnt lgkmcnt(0)")
    A("s_cmp_eq_u32 s22, 0")
    A("s_cselect_b32 s4, s4, s6")
    A("s_cselect_b32 s5, s5, s7")
    srd(8, 4, S * S * 2)
    A("s_mul_i32 s26, s22, 0x%x" % (D * S * 2))
    A("s_add_u32 s27, s26, 0x%x" % ABT_OFF)
    A("s_add_u32 s12, s24, s27")
    A("s_addc_u32 s13, s25, 0")
    A("s_mov_b32 s14, 0x%x" % (D * S * 2))
    A("s_mov_b32 s15, 0x00020000")
    A("s_add_u32 s27, s26, 0x%x" % Y_OFF)
    A("s_add_u32 s16, s24, s27")
    A("s_addc_u32 s17, s25, 0")
    A("s_mov_b32 s18, 0x%x" % (S * D * 2))
    A("s_mov_b32 s19, 0x00020000")


def k_ln2():
    name = "ln2_kernel"
    begin_kernel(name)
    A("s_cmp_ge_u32 s2, 512")
    A("s_cbranch_scc1 %s_done" % name)
    A("s_load_dwordx2 s[4:5], s[0:1], 0")
    A("s_load_dwordx2 s[6:7], s[0:1], 96")
    A("s_load_dwordx2 s[24:25], s[0:1], 48")
    A("s_load_dwordx2 s[26:27], s[0:1], 80")
    A("v_lshrrev_b32 v1, 6, v0")
    A("s_lshl_b32 s3, s2, 2")
    A("v_add_u32 v3, s3, v1")
    A("v_mul_u32_u24 v1, 1280, v3")
    A("v_and_b32 v2, 63, v0")
    A("v_lshl_add_u32 v1, v2, 2, v1")
    A("v_lshlrev_b32 v4, 2, v2")
    A("s_waitcnt lgkmcnt(0)")
    srd(8, 4, S * D * 2)
    srd(12, 6, WS_SIZE)
    srd(16, 24, D * 2)
    srd(28, 26, S * D * 2)
    A("s_mov_b32 s20, 0x%x" % Y_OFF)
    A("s_mov_b32 s21, 0x%x" % (Y_OFF + S * D * 2))
    for i in range(5):
        A("buffer_load_dword v%d, v1, s[8:11], 0 offen offset:%d" % (10 + i, i * 256))
        A("buffer_load_dword v%d, v1, s[12:15], s20 offen offset:%d" % (15 + i, i * 256))
        A("buffer_load_dword v%d, v1, s[12:15], s21 offen offset:%d" % (50 + i, i * 256))
        A("buffer_load_dword v%d, v4, s[16:19], 0 offen offset:%d" % (55 + i, i * 256))
    A("s_waitcnt vmcnt(0)")
    f = list(range(20, 30))
    q = list(range(30, 40))
    for i in range(5):
        unpack(60, 61, 15 + i)
        unpack(62, 63, 50 + i)
        A("v_sub_f32 v60, v60, v62")
        A("v_sub_f32 v61, v61, v63")
        A("v_cvt_pk_bf16_f32 v62, v60, v61")
        unpack(60, 61, 62)
        unpack(62, 63, 10 + i)
        A("v_add_f32 v60, v60, v62")
        A("v_add_f32 v61, v61, v63")
        A("v_cvt_pk_bf16_f32 v%d, v60, v61" % (15 + i))
        unpack(f[2 * i], f[2 * i + 1], 15 + i)
    layernorm10(f, q, [40, 41, 42, 43, 44, 45], 20)
    A("v_mov_b32 v40, 0")
    for i in range(5):
        unpack(60, 61, 55 + i)
        A("v_fmac_f32 v40, v60, v%d" % q[2 * i])
        A("v_fmac_f32 v40, v61, v%d" % q[2 * i + 1])
    wave_reduce("add_f32", 40, 20)
    A("v_mov_b32 v40, s20")
    A("v_cvt_pk_bf16_f32 v40, v40, v40")
    A("s_mov_b32 s20, 0x%x" % H_OFF)
    A("s_mov_b32 s21, 0x%x" % HL_OFF)
    for i in range(5):
        A("v_cvt_pk_bf16_f32 v%d, v%d, v%d" % (50 + i, q[2 * i], q[2 * i + 1]))
        A("v_add_f32 v60, v%d, v%d" % (f[2 * i], q[2 * i]))
        A("v_add_f32 v61, v%d, v%d" % (f[2 * i + 1], q[2 * i + 1]))
        A("v_cvt_pk_bf16_f32 v%d, v60, v61" % (10 + i))
        A("buffer_store_dword v%d, v1, s[28:31], 0 offen offset:%d" % (10 + i, i * 256))
        A("buffer_store_dword v%d, v1, s[12:15], s20 offen offset:%d" % (15 + i, i * 256))
        A("buffer_store_dword v%d, v1, s[12:15], s21 offen offset:%d" % (50 + i, i * 256))
    A("v_lshlrev_b32 v3, 1, v3")
    A("s_mov_b32 s20, 0x%x" % R_OFF)
    A("v_cmp_eq_u32 vcc, 0, v2")
    A("s_and_saveexec_b64 s[22:23], vcc")
    A("buffer_store_short v40, v3, s[12:15], s20 offen")
    L(name + "_done")
    end_kernel(name, 64)


def k_ffn1():
    name = "ffn1_kernel"
    begin_kernel(name)
    A("s_cmp_ge_u32 s2, 96")
    A("s_cbranch_scc1 %s_done" % name)
    A("s_load_dwordx2 s[4:5], s[0:1], 56")
    A("s_load_dwordx2 s[6:7], s[0:1], 64")
    A("s_load_dwordx2 s[24:25], s[0:1], 96")
    A("v_and_b32 v1, 63, v0")
    A("v_and_b32 v2, 15, v0")
    A("v_lshrrev_b32 v3, 4, v1")
    A("v_lshrrev_b32 v4, 6, v0")
    A("s_waitcnt lgkmcnt(0)")
    srd(8, 4, D * F * 2)
    srd(12, 6, D * F * 2)
    srd(16, 24, WS_SIZE)
    A("v_lshlrev_b32 v5, 4, v0")
    A("s_mov_b32 s20, 0x%x" % R_OFF)
    A("buffer_load_dwordx4 v[8:11], v5, s[16:19], s20 offen")
    A("v_mul_u32_u24 v5, 160, v4")
    A("v_lshl_add_u32 v5, v3, 3, v5")
    A("v_mul_u32_u24 v5, 3072, v5")
    A("s_lshl_b32 s20, s2, 4")
    A("v_add_u32 v6, s20, v2")
    A("v_lshl_add_u32 v5, v6, 1, v5")
    vG, vU = 64, 84
    rG, rU = 128, 168
    for step in range(5):
        for j in range(8):
            A("s_mov_b32 s20, %d" % ((step * 32 + j) * 3072))
            A("buffer_load_ushort v%d, v5, s[8:11], s20 offen" % (rG + step * 8 + j))
            A("buffer_load_ushort v%d, v5, s[12:15], s20 offen" % (rU + step * 8 + j))
    A("s_mov_b32 s21, 0x7fff")
    A("v_lshlrev_b32 v6, 3, v0")
    A("v_sub_u32 v6, 2047, v6")
    A("s_waitcnt vmcnt(63)")
    for i in range(8):
        d = 8 + i // 2
        if i & 1:
            A("v_lshrrev_b32 v20, 16, v%d" % d)
        else:
            A("v_and_b32 v20, 0xffff, v%d" % d)
        A("v_bfe_i32 v21, v20, 15, 1")
        A("v_and_b32 v21, s21, v21")
        A("v_or_b32 v21, 0x8000, v21")
        A("v_xor_b32 v20, v20, v21")
        A("v_subrev_u32 v21, %d, v6" % i)
        A("v_lshl_or_b32 v%d, v20, 11, v21" % (24 + i))
    for rnd in range(8):
        A("v_max3_u32 v20, v24, v25, v26")
        A("v_max3_u32 v20, v20, v27, v28")
        A("v_max3_u32 v20, v20, v29, v30")
        A("v_max_u32 v20, v20, v31")
        wave_reduce("max_u32", 20, 20)
        A("v_mov_b32 v20, s20")
        A("v_lshlrev_b32 v21, 2, v4")
        A("ds_write_b32 v21, v20 offset:%d" % (rnd * 16))
        A("s_waitcnt lgkmcnt(0)")
        A("s_barrier")
        A("v_mov_b32 v21, 0")
        A("ds_read_b128 v[32:35], v21 offset:%d" % (rnd * 16))
        A("s_waitcnt lgkmcnt(0)")
        A("v_max3_u32 v20, v32, v33, v34")
        A("v_max_u32 v20, v20, v35")
        for i in range(8):
            A("v_cmp_eq_u32 vcc, v20, v%d" % (24 + i))
            A("s_nop 1")
            A("v_cndmask_b32 v%d, v%d, 0, vcc" % (24 + i, 24 + i)) if False else None
            A("v_cndmask_b32_e64 v%d, v%d, 0, vcc" % (24 + i, 24 + i))
        A("v_and_b32 v21, 2047, v20")
        A("v_sub_u32 v21, 2047, v21")
        A("s_nop 0")
        A("v_readfirstlane_b32 s%d, v21" % (40 + rnd))
    A("v_and_b32 v20, 7, v1")
    A("v_mov_b32 v21, s40")
    for j in range(1, 8):
        A("v_cmp_eq_u32 vcc, %d, v20" % j)
        A("v_mov_b32 v22, s%d" % (40 + j))
        A("s_nop 0")
        A("v_cndmask_b32 v21, v21, v22, vcc")
    A("v_mul_u32_u24 v21, 1280, v21")
    A("v_mul_u32_u24 v22, 320, v4")
    A("v_add_u32 v21, v21, v22")
    A("v_lshl_add_u32 v21, v3, 4, v21")
    A("s_mov_b32 s20, 0x%x" % HL_OFF)
    vX = 104
    for step in range(5):
        A("buffer_load_dwordx4 v[%d:%d], v21, s[16:19], s20 offen offset:%d" % (vX + step * 4, vX + step * 4 + 3, step * 64))
    for i in range(8):
        A("v_mov_b32 v%d, 0" % (40 + i))
    A("s_waitcnt vmcnt(0)")
    for i in range(20):
        A("v_lshl_or_b32 v%d, v%d, 16, v%d" % (vG + i, rG + 2 * i + 1, rG + 2 * i))
        A("v_lshl_or_b32 v%d, v%d, 16, v%d" % (vU + i, rU + 2 * i + 1, rU + 2 * i))
    A("s_nop 1")
    for step in range(5):
        x = vX + step * 4
        A("v_mfma_f32_16x16x32_bf16 v[40:43], v[%d:%d], v[%d:%d], v[40:43]" % (x, x + 3, vG + step * 4, vG + step * 4 + 3))
        A("v_mfma_f32_16x16x32_bf16 v[44:47], v[%d:%d], v[%d:%d], v[44:47]" % (x, x + 3, vU + step * 4, vU + step * 4 + 3))
    A("s_nop 7")
    A("s_nop 1")
    A("v_lshlrev_b32 v20, 4, v1")
    A("v_lshl_add_u32 v20, v4, 11, v20")
    A("ds_write_b128 v20, v[40:43] offset:256")
    A("ds_write_b128 v20, v[44:47] offset:1280")
    A("s_waitcnt lgkmcnt(0)")
    A("s_barrier")
    A("v_cmp_gt_u32 vcc, 32, v0")
    A("s_and_saveexec_b64 s[22:23], vcc")
    A("s_cbranch_execz %s_done" % name)
    A("v_lshlrev_b32 v20, 4, v1")
    for w in range(1, 4):
        A("ds_read_b128 v[48:51], v20 offset:%d" % (256 + w * 2048))
        A("ds_read_b128 v[52:55], v20 offset:%d" % (1280 + w * 2048))
        A("s_waitcnt lgkmcnt(0)")
        for i in range(8):
            A("v_add_f32 v%d, v%d, v%d" % (40 + i, 40 + i, 48 + i))
    A("s_mov_b32 s20, 0x%x" % T_OFF)
    A("s_lshl_b32 s21, s2, 4")
    A("v_add_u32 v21, s21, v2")
    A("v_lshlrev_b32 v21, 1, v21")
    A("v_mul_u32_u24 v22, %d, v3" % (4 * 3072))
    A("v_add_u32 v21, v21, v22")
    for r in range(4):
        bf_round(40 + r, 40 + r)
        bf_round(44 + r, 44 + r)
        A("v_mul_f32 v48, 0xbfb8aa3b, v%d" % (40 + r))
        A("v_exp_f32 v48, v48")
        A("s_nop 0")
        A("v_add_f32 v48, 1.0, v48")
        A("v_rcp_f32 v48, v48")
        A("s_nop 0")
        A("v_mul_f32 v48, v48, v%d" % (40 + r))
        bf_round(48, 48)
        A("v_mul_f32 v48, v48, v%d" % (44 + r))
        A("v_cvt_pk_bf16_f32 v48, v48, v48")
        A("buffer_store_short v48, v21, s[16:19], s20 offen")
        A("v_add_u32 v21, 3072, v21")
    A("s_cmp_lg_u32 s2, 0")
    A("s_cbranch_scc1 %s_done" % name)
    A("v_cmp_eq_u32 vcc, 0, v0")
    A("s_and_saveexec_b64 s[22:23], vcc")
    for j in range(8):
        A("v_mov_b32 v%d, s%d" % (40 + j, 40 + j))
    A("v_mov_b32 v20, 0")
    A("s_mov_b32 s20, 0x%x" % IDX_OFF)
    A("buffer_store_dwordx4 v[40:43], v20, s[16:19], s20 offen")
    A("buffer_store_dwordx4 v[44:47], v20, s[16:19], s20 offen offset:16")
    L(name + "_done")
    end_kernel(name, 208)


def k_ffn2():
    name = "ffn2_kernel"
    begin_kernel(name)
    A("s_cmp_ge_u32 s2, 40")
    A("s_cbranch_scc1 %s_done" % name)
    A("s_load_dwordx2 s[4:5], s[0:1], 72")
    A("s_load_dwordx2 s[6:7], s[0:1], 80")
    A("s_load_dwordx2 s[24:25], s[0:1], 96")
    A("v_and_b32 v1, 63, v0")
    A("v_and_b32 v2, 15, v0")
    A("v_lshrrev_b32 v3, 4, v1")
    A("v_lshrrev_b32 v4, 6, v0")
    A("s_waitcnt lgkmcnt(0)")
    srd(8, 4, D * F * 2)
    srd(12, 6, S * D * 2)
    srd(16, 24, WS_SIZE)
    A("s_add_u32 s26, s24, 0x%x" % IDX_OFF)
    A("s_addc_u32 s27, s25, 0")
    A("s_load_dwordx8 s[40:47], s[26:27], 0")
    A("v_mul_u32_u24 v5, 384, v4")
    A("v_lshl_add_u32 v5, v3, 3, v5")
    A("v_mul_u32_u24 v5, 1280, v5")
    A("s_lshl_b32 s20, s2, 4")
    A("v_add_u32 v6, s20, v2")
    A("v_lshl_add_u32 v5, v6, 1, v5")
    vW = 64
    rW = 160
    for step in range(12):
        for j in range(8):
            A("s_mov_b32 s20, %d" % ((step * 32 + j) * 1280))
            A("buffer_load_ushort v%d, v5, s[8:11], s20 offen" % (rW + step * 8 + j))
    A("v_and_b32 v20, 7, v1")
    A("v_mul_u32_u24 v20, 3072, v20")
    A("v_mul_u32_u24 v21, 768, v4")
    A("v_add_u32 v20, v20, v21")
    A("v_lshl_add_u32 v20, v3, 4, v20")
    A("s_mov_b32 s20, 0x%x" % T_OFF)
    vX = 112
    for step in range(12):
        A("buffer_load_dwordx4 v[%d:%d], v20, s[16:19], s20 offen offset:%d" % (vX + step * 4, vX + step * 4 + 3, step * 64))
    for i in range(4):
        A("v_mov_b32 v%d, 0" % (40 + i))
    A("s_waitcnt vmcnt(0)")
    for i in range(48):
        A("v_lshl_or_b32 v%d, v%d, 16, v%d" % (vW + i, rW + 2 * i + 1, rW + 2 * i))
    A("s_nop 1")
    for step in range(12):
        x = vX + step * 4
        A("v_mfma_f32_16x16x32_bf16 v[40:43], v[%d:%d], v[%d:%d], v[40:43]" % (x, x + 3, vW + step * 4, vW + step * 4 + 3))
    A("s_nop 7")
    A("s_nop 1")
    A("v_lshlrev_b32 v20, 4, v1")
    A("v_lshl_add_u32 v20, v4, 10, v20")
    A("ds_write_b128 v20, v[40:43]")
    A("s_waitcnt lgkmcnt(0)")
    A("s_barrier")
    A("v_cmp_gt_u32 vcc, 32, v0")
    A("s_and_saveexec_b64 s[22:23], vcc")
    A("s_cbranch_execz %s_done" % name)
    A("v_lshlrev_b32 v20, 4, v1")
    for w in range(1, 4):
        A("ds_read_b128 v[48:51], v20 offset:%d" % (w * 1024))
        A("s_waitcnt lgkmcnt(0)")
        for i in range(4):
            A("v_add_f32 v%d, v%d, v%d" % (40 + i, 40 + i, 48 + i))
    A("v_cmp_eq_u32 vcc, 1, v3")
    A("s_mov_b32 s20, 0x%x" % R_OFF)
    A("s_mov_b32 s21, 0x%x" % H_OFF)
    A("s_mov_b32 s28, 0x%x" % HL_OFF)
    for r in range(4):
        A("v_mov_b32 v20, s%d" % (40 + r))
        A("v_mov_b32 v21, s%d" % (44 + r))
        A("v_cndmask_b32 v20, v20, v21, vcc")
        A("v_lshlrev_b32 v21, 1, v20")
        A("buffer_load_ushort v%d, v21, s[16:19], s20 offen" % (52 + r))
        A("v_mul_u32_u24 v20, 1280, v20")
        A("v_lshl_add_u32 v%d, v6, 1, v20" % (56 + r))
        A("buffer_load_ushort v%d, v%d, s[16:19], s21 offen" % (60 + r, 56 + r))
        A("buffer_load_ushort v%d, v%d, s[16:19], s28 offen" % (48 + r, 56 + r))
    A("s_waitcnt vmcnt(0)")
    for r in range(4):
        bf_round(40 + r, 40 + r)
        A("v_lshlrev_b32 v20, 16, v%d" % (52 + r))
        A("v_mul_f32 v20, 0xbfb8aa3b, v20")
        A("v_exp_f32 v20, v20")
        A("s_nop 0")
        A("v_add_f32 v20, 1.0, v20")
        A("v_rcp_f32 v20, v20")
        A("s_nop 0")
        bf_round(20, 20)
        A("v_mul_f32 v20, v20, v%d" % (40 + r))
        bf_round(20, 20)
        A("v_lshlrev_b32 v21, 16, v%d" % (48 + r))
        A("v_add_f32 v20, v20, v21")
        bf_round(20, 20)
        A("v_lshlrev_b32 v21, 16, v%d" % (60 + r))
        A("v_add_f32 v20, v20, v21")
        A("v_cvt_pk_bf16_f32 v20, v20, v20")
        A("buffer_store_short v20, v%d, s[12:15], 0 offen" % (56 + r))
    L(name + "_done")
    end_kernel(name, 256)


def main():
    hdr = open("cdna_kernels/%s.s.ref" % NAME).read().split("; @launch")[0]
    body_start = len(out)
    out.append('.amdgcn_target "amdgcn-amd-amdhsa--gfx950"')
    out.append(".text")
    k_lnx()
    lds1 = k_gemm("g1_kernel", 256, setup_g1, 1280, 1280, 4096, 640, 80, 3, True)
    lds2 = k_gemm("g2_kernel", 256, setup_g2, 4096, 4096, 1280, 2048, 80, 3, False)
    k_ln2()
    k_ffn1()
    k_ffn2()
    launches = [
        "; @launch kernel=lnx_kernel grid=(512,1,1) block=(256,1,1) lds=0",
        "; @launch kernel=g1_kernel grid=(256,1,1) block=(256,1,1) lds=%d" % lds1,
        "; @launch kernel=g2_kernel grid=(256,1,1) block=(256,1,1) lds=%d" % lds2,
        "; @launch kernel=ln2_kernel grid=(512,1,1) block=(256,1,1) lds=0",
        "; @launch kernel=ffn1_kernel grid=(96,1,1) block=(256,1,1) lds=8448",
        "; @launch kernel=ffn2_kernel grid=(40,1,1) block=(256,1,1) lds=4096",
    ]
    txt = hdr + "\n".join(launches) + "\n" + "\n".join(out) + "\n"
    txt += '.section .rodata,"a"\n'
    for name, vgpr, sgpr in kds:
        acc = (vgpr + 3) // 4 * 4
        txt += ".p2align 6\n.amdhsa_kernel %s\n" % name
        txt += "  .amdhsa_next_free_vgpr %d\n  .amdhsa_next_free_sgpr %d\n  .amdhsa_accum_offset %d\n" % (vgpr, sgpr, acc)
        txt += "  .amdhsa_group_segment_fixed_size 0\n  .amdhsa_kernarg_size 104\n  .amdhsa_user_sgpr_count 2\n"
        txt += "  .amdhsa_user_sgpr_kernarg_segment_ptr 1\n  .amdhsa_system_sgpr_workgroup_id_x 1\n.end_amdhsa_kernel\n"
    dst = sys.argv[1] if len(sys.argv) > 1 else "cdna_kernels/%s.s" % NAME
    open(dst, "w").write(txt)


main()
```

```python
import sys, os
VAR = os.environ.get("VAR", "")

NAME = "sequential_preLN__spectral_fnet__moe_arch_mod__prompt"
S, D, F = 2048, 640, 1536
MB = 1 << 20
XL_OFF = 0
ABT_OFF = 4 * MB
Y_OFF = 12 * MB
H_OFF = 20 * MB
HL_OFF = 24 * MB
R_OFF = 28 * MB
IDX_OFF = R_OFF + 8192
T_OFF = R_OFF + 16384
WS_SIZE = 96 * MB

out = []


def A(s):
    out.append("    " + s)


def L(s):
    out.append(s + ":")


def begin_kernel(name):
    out.append(".globl %s" % name)
    out.append(".p2align 8")
    out.append(".type %s,@function" % name)
    out.append("%s:" % name)


kds = []


def end_kernel(name, vgpr, sgpr=102):
    A("s_endpgm")
    kds.append((name, vgpr, sgpr))


def srd(d, lo, nbytes, add=None):
    if add:
        A("s_add_u32 s%d, s%d, 0x%x" % (d, lo, add))
        A("s_addc_u32 s%d, s%d, 0" % (d + 1, lo + 1))
    else:
        A("s_mov_b32 s%d, s%d" % (d, lo))
        A("s_mov_b32 s%d, s%d" % (d + 1, lo + 1))
    A("s_mov_b32 s%d, 0x%x" % (d + 2, nbytes))
    A("s_mov_b32 s%d, 0x00020000" % (d + 3))


def wave_reduce(op, v, sdst):
    for m in ["quad_perm:[1,0,3,2] row_mask:0xf bank_mask:0xf",
              "quad_perm:[2,3,0,1] row_mask:0xf bank_mask:0xf",
              "row_half_mirror row_mask:0xf bank_mask:0xf",
              "row_mirror row_mask:0xf bank_mask:0xf",
              "row_bcast:15 row_mask:0xa bank_mask:0xf",
              "row_bcast:31 row_mask:0xc bank_mask:0xf"]:
        A("s_nop 1")
        A("v_%s_dpp v%d, v%d, v%d %s" % (op, v, v, v, m))
    A("s_nop 0")
    A("v_readlane_b32 s%d, v%d, 63" % (sdst, v))
    A("s_nop 1")


def bf_round(vd, vs):
    A("v_cvt_pk_bf16_f32 v%d, v%d, v%d" % (vd, vs, vs))
    A("v_lshlrev_b32 v%d, 16, v%d" % (vd, vd))


def unpack(vlo, vhi, vs):
    A("v_lshlrev_b32 v%d, 16, v%d" % (vlo, vs))
    A("v_and_b32 v%d, 0xffff0000, v%d" % (vhi, vs))


def layernorm10(f, q, t, sA):
    t0, t1, t2, t3, t4, t5 = t
    A("v_add_f32 v%d, v%d, v%d" % (t0, f[0], f[1]))
    for i in range(2, 10):
        A("v_add_f32 v%d, v%d, v%d" % (t0, t0, f[i]))
    wave_reduce("add_f32", t0, sA)
    A("v_mov_b32 v%d, s%d" % (t1, sA))
    A("v_mul_f32 v%d, 0x3acccccd, v%d" % (t1, t1))
    A("v_mov_b32 v%d, 0" % t2)
    for i in range(10):
        A("v_sub_f32 v%d, v%d, v%d" % (t3, f[i], t1))
        A("v_fmac_f32 v%d, v%d, v%d" % (t2, t3, t3))
    wave_reduce("add_f32", t2, sA)
    A("v_mov_b32 v%d, s%d" % (t2, sA))
    A("v_mul_f32 v%d, 0x3acccccd, v%d" % (t2, t2))
    bf_round(t1, t1)
    bf_round(t2, t2)
    A("v_add_f32 v%d, 0x3727c5ac, v%d" % (t2, t2))
    bf_round(t2, t2)
    A("v_sqrt_f32 v%d, v%d" % (t2, t2))
    A("s_nop 0")
    bf_round(t2, t2)
    A("v_rcp_f32 v%d, v%d" % (t3, t2))
    A("s_nop 0")
    for i in range(0, 10, 2):
        A("v_sub_f32 v%d, v%d, v%d" % (t4, f[i], t1))
        A("v_sub_f32 v%d, v%d, v%d" % (t5, f[i + 1], t1))
        A("v_cvt_pk_bf16_f32 v%d, v%d, v%d" % (t4, t4, t5))
        unpack(q[i], q[i + 1], t4)
    for i in range(10):
        A("v_mul_f32 v%d, v%d, v%d" % (t4, q[i], t3))
        A("v_fma_f32 v%d, -v%d, v%d, v%d" % (t5, t4, t2, q[i]))
        A("v_fma_f32 v%d, v%d, v%d, v%d" % (q[i], t5, t3, t4))
    for i in range(0, 10, 2):
        A("v_cvt_pk_bf16_f32 v%d, v%d, v%d" % (t4, q[i], q[i + 1]))
        unpack(q[i], q[i + 1], t4)


def k_lnx():
    name = "lnx_kernel"
    begin_kernel(name)
    A("s_cmp_ge_u32 s2, 512")
    A("s_cbranch_scc1 %s_done" % name)
    A("s_load_dwordx2 s[4:5], s[0:1], 0")
    A("s_load_dwordx2 s[6:7], s[0:1], 96")
    A("v_lshrrev_b32 v1, 6, v0")
    A("s_lshl_b32 s3, s2, 2")
    A("v_add_u32 v1, s3, v1")
    A("v_mul_u32_u24 v1, 1280, v1")
    A("v_and_b32 v2, 63, v0")
    A("v_lshl_add_u32 v1, v2, 2, v1")
    A("s_waitcnt lgkmcnt(0)")
    srd(8, 4, S * D * 2)
    srd(12, 6, S * D * 2, XL_OFF)
    for i in range(5):
        A("buffer_load_dword v%d, v1, s[8:11], 0 offen offset:%d" % (10 + i, i * 256))
    A("s_waitcnt vmcnt(0)")
    f = list(range(20, 30))
    q = list(range(30, 40))
    for i in range(5):
        unpack(f[2 * i], f[2 * i + 1], 10 + i)
    layernorm10(f, q, [40, 41, 42, 43, 44, 45], 20)
    for i in range(5):
        A("v_cvt_pk_bf16_f32 v%d, v%d, v%d" % (10 + i, q[2 * i], q[2 * i + 1]))
        A("buffer_store_dword v%d, v1, s[12:15], 0 offen offset:%d" % (10 + i, i * 256))
    L(name + "_done")
    end_kernel(name, 48)


def k_gemm(name, nwg, setup, pitchA, pitchB, pitchO, K, BN, RING, transposed):
    NT = BN // 16
    CHB = BN // 16
    CHA = 8
    NS = K // 128
    PF = RING - 1
    ASZ = 128 * 256
    BUFSZ = ASZ + BN * 256
    begin_kernel(name)
    A("s_cmp_ge_u32 s2, %d" % nwg)
    A("s_cbranch_scc1 %s_done" % name)
    A("v_and_b32 v1, 63, v0")
    A("v_and_b32 v2, 15, v0")
    A("v_lshrrev_b32 v3, 4, v1")
    A("v_lshrrev_b32 v4, 6, v0")
    A("s_nop 0")
    A("v_readfirstlane_b32 s23, v4")
    setup()
    A("s_lshl_b32 s26, s20, 7")
    A("s_lshl_b32 s27, s23, 5")
    A("s_add_u32 s26, s26, s27")
    if not transposed:
        A("v_add_u32 v5, s26, v2")
        A("s_mov_b32 s27, %d" % pitchO)
        A("v_mul_lo_u32 v8, v5, s27")
        A("s_mul_i32 s26, s21, %d" % (BN * 2))
        A("v_add_u32 v8, s26, v8")
        A("v_lshl_add_u32 v8, v3, 3, v8")
        A("v_add_u32 v9, %d, v8" % (16 * pitchO))
    else:
        A("s_mul_i32 s27, s21, %d" % BN)
        A("v_add_u32 v5, s27, v2")
        A("s_mov_b32 s27, %d" % pitchO)
        A("v_mul_lo_u32 v8, v5, s27")
        A("s_lshl_b32 s26, s26, 1")
        A("v_add_u32 v8, s26, v8")
        A("v_lshl_add_u32 v8, v3, 3, v8")
        A("v_add_u32 v9, 32, v8")
    vSA = 10
    vSB = vSA + CHA
    for (base, CH, rows_sgpr, rows_mul, pitch) in ((vSA, CHA, 20, 128, pitchA), (vSB, CHB, 21, BN, pitchB)):
        for j in range(CH):
            A("s_mul_i32 s26, s23, %d" % (CH * 4))
            A("s_add_u32 s26, s26, %d" % (4 * j))
            A("v_add_u32 v60, s26, v3")
            A("v_and_b32 v61, 15, v60")
            A("v_xor_b32 v61, v61, v2")
            A("s_mul_i32 s27, s%d, %d" % (rows_sgpr, rows_mul))
            A("v_add_u32 v60, s27, v60")
            A("s_mov_b32 s27, %d" % pitch)
            A("v_mul_lo_u32 v60, v60, s27")
            A("v_lshl_add_u32 v%d, v61, 4, v60" % (base + j))
    vL = vSB + CHB
    vLA = vL + 8
    A("s_lshl_b32 s26, s23, 13")
    for step in range(4):
        A("v_lshlrev_b32 v60, 1, v3")
        A("v_add_u32 v60, %d, v60" % ((step >> 1) * 8 + (step & 1)))
        A("v_xor_b32 v60, v60, v2")
        A("v_lshlrev_b32 v60, 4, v60")
        A("v_lshl_add_u32 v%d, v2, 8, v60" % (vL + step))
        A("v_add_u32 v%d, 0x10000, v%d" % (vL + 4 + step, vL + step))
        A("v_add_u32 v%d, s26, v%d" % (vLA + step, vL + step))
        A("v_add_u32 v%d, 0x10000, v%d" % (vLA + 4 + step, vLA + step))
    A("s_mul_i32 s28, s23, %d" % (CHA * 1024))
    A("s_mul_i32 s30, s23, %d" % (CHB * 1024))
    A("s_add_u32 s30, s30, %d" % ASZ)
    base = (vLA + 8 + 3) // 4 * 4
    vAcc = base
    vBf = vAcc + 2 * NT * 4
    vAf = vBf + 2 * NT * 4
    vend = vAf + 16
    assert vend <= 256, vend

    def acc(t, n):
        return vAcc + (t * NT + n) * 4

    def issue(stage):
        buf = stage % RING
        for j in range(CHA):
            A("s_add_u32 m0, s28, %d" % (buf * BUFSZ + j * 1024))
            A("s_nop 0")
            if "noa" not in VAR: A("buffer_load_dwordx4 v%d, s[8:11], s29 offen lds" % (vSA + j))
        for j in range(CHB):
            A("s_add_u32 m0, s30, %d" % (buf * BUFSZ + j * 1024))
            A("s_nop 0")
            if "nodma" not in VAR: A("buffer_load_dwordx4 v%d, s[12:15], s29 offen lds" % (vSB + j))

    def reads(stage, step, st):
        buf = stage % RING
        for t in range(2):
            r = vAf + (st * 2 + t) * 4
            off = buf * BUFSZ + t * 4096
            if "nods" not in VAR: A("ds_read_b128 v[%d:%d], v%d offset:%d" % (r, r + 3, vLA + step + (4 if off >= 65536 else 0), off & 65535))
        for n in range(NT):
            r = vBf + (st * NT + n) * 4
            off = buf * BUFSZ + ASZ + n * 4096
            hi = off >> 16
            assert hi <= 2
            if hi == 2:
                A("v_add_u32 v6, 0x10000, v%d" % (vL + 4 + step))
                if "nods" not in VAR: A("ds_read_b128 v[%d:%d], v6 offset:%d" % (r, r + 3, off & 65535))
            else:
                if "nods" not in VAR: A("ds_read_b128 v[%d:%d], v%d offset:%d" % (r, r + 3, vL + step + 4 * hi, off & 65535))

    def mfmas(stage, step, st):
        for t in range(2):
            for n in range(NT):
                a = acc(t, n)
                b = vBf + (st * NT + n) * 4
                r = vAf + (st * 2 + t) * 4
                x, y = (r, b) if transposed else (b, r)
                if "nomfma" not in VAR: A("v_mfma_f32_16x16x32_bf16 v[%d:%d], v[%d:%d], v[%d:%d], v[%d:%d]" % (
                    a, a + 3, x, x + 3, y, y + 3, a, a + 3))

    LPS = CHA + CHB
    A("s_mov_b32 s29, 0")
    for s in range(PF):
        issue(s)
        A("s_add_u32 s29, s29, 256")
    A("s_mov_b32 s31, %d" % NS)
    for i in range(2 * NT * 4):
        A("v_mov_b32 v%d, 0" % (vAcc + i))
    A("s_waitcnt vmcnt(%d)" % (LPS * (PF - 1)))
    A("s_barrier")
    st = 0
    reads(0, 0, st)
    L(name + "_loop")
    for s in range(RING):
        issue(s + PF)
        A("s_add_u32 s29, s29, 256")
        for step in range(4):
            if step < 3:
                reads(s, step + 1, st ^ 1)
                A("s_waitcnt lgkmcnt(%d)" % (NT + 2))
            else:
                A("s_waitcnt vmcnt(%d) lgkmcnt(0)" % (LPS * (PF - 1)))
                A("s_barrier")
                reads(s + 1, 0, st ^ 1)
            mfmas(s, step, st)
            st ^= 1
        A("s_sub_u32 s31, s31, 1")
        A("s_cmp_eq_u32 s31, 0")
        if s < RING - 1:
            A("s_cbranch_scc1 %s_exit" % name)
        else:
            A("s_cbranch_scc0 %s_loop" % name)
    L(name + "_exit")
    A("s_waitcnt vmcnt(0) lgkmcnt(0)")
    A("s_nop 7")
    A("s_nop 1")
    for t in range(2):
        for n in range(NT):
            a = acc(t, n)
            A("v_cvt_pk_bf16_f32 v%d, v%d, v%d" % (a, a, a + 1))
            A("v_cvt_pk_bf16_f32 v%d, v%d, v%d" % (a + 1, a + 2, a + 3))
            if not transposed:
                A("buffer_store_dwordx2 v[%d:%d], v%d, s[16:19], 0 offen offset:%d" % (a, a + 1, 8 + t, n * 32))
            else:
                A("s_mov_b32 s26, %d" % (n * 16 * pitchO))
                A("buffer_store_dwordx2 v[%d:%d], v%d, s[16:19], s26 offen" % (a, a + 1, 8 + t))
    L(name + "_done")
    end_kernel(name, vend)
    return RING * BUFSZ


P_OFF = 64 * MB


def k_gemm2():
    name = "g2_kernel"
    TM, NT, RING, PF, NS = 4, 5, 4, 3, 16
    CHA, CHB = 4, 5
    ASZ = 128 * 128
    BUFSZ = ASZ + 160 * 128
    begin_kernel(name)
    A("s_cmp_ge_u32 s2, 256")
    A("s_cbranch_scc1 %s_done" % name)
    A("s_load_dwordx2 s[4:5], s[0:1], 8")
    A("s_load_dwordx2 s[6:7], s[0:1], 16")
    A("s_load_dwordx2 s[24:25], s[0:1], 96")
    A("v_and_b32 v1, 63, v0")
    A("v_and_b32 v2, 15, v0")
    A("v_lshrrev_b32 v3, 4, v1")
    A("v_lshrrev_b32 v4, 6, v0")
    A("s_nop 0")
    A("v_readfirstlane_b32 s23, v4")
    A("s_and_b32 s26, s2, 7")
    A("s_lshr_b32 s27, s2, 3")
    A("s_and_b32 s21, s27, 3")
    A("s_lshr_b32 s27, s27, 2")
    A("s_lshl_b32 s26, s26, 3")
    A("s_add_u32 s26, s26, s27")
    A("s_and_b32 s20, s26, 15")
    A("s_lshr_b32 s33, s26, 4")
    A("s_and_b32 s22, s33, 1")
    A("s_lshr_b32 s32, s33, 1")
    A("s_waitcnt lgkmcnt(0)")
    A("s_cmp_eq_u32 s22, 0")
    A("s_cselect_b32 s4, s4, s6")
    A("s_cselect_b32 s5, s5, s7")
    srd(8, 4, S * S * 2)
    A("s_mul_i32 s26, s22, 0x%x" % (D * S * 2))
    A("s_add_u32 s27, s26, 0x%x" % ABT_OFF)
    A("s_add_u32 s12, s24, s27")
    A("s_addc_u32 s13, s25, 0")
    A("s_mov_b32 s14, 0x%x" % (D * S * 2))
    A("s_mov_b32 s15, 0x00020000")
    A("s_mul_i32 s26, s33, 0x%x" % (S * D * 4))
    A("s_add_u32 s27, s26, 0x%x" % P_OFF)
    A("s_add_u32 s16, s24, s27")
    A("s_addc_u32 s17, s25, 0")
    A("s_mov_b32 s18, 0x%x" % (S * D * 4))
    A("s_mov_b32 s19, 0x00020000")
    A("s_lshr_b32 s34, s23, 1")
    A("s_and_b32 s35, s23, 1")
    A("s_lshl_b32 s26, s20, 7")
    A("s_lshl_b32 s27, s34, 6")
    A("s_add_u32 s26, s26, s27")
    A("v_add_u32 v5, s26, v2")
    A("v_mul_u32_u24 v8, 2560, v5")
    A("s_mul_i32 s26, s21, 640")
    A("s_mul_i32 s27, s35, 320")
    A("s_add_u32 s26, s26, s27")
    A("v_add_u32 v8, s26, v8")
    A("v_lshl_add_u32 v8, v3, 4, v8")
    A("v_lshrrev_b32 v6, 3, v1")
    A("v_and_b32 v7, 7, v1")
    vSA = 10
    vSB = vSA + CHA
    for (base, CH, rs, rm) in ((vSA, CHA, 20, 128), (vSB, CHB, 21, 160)):
        for j in range(CH):
            A("s_mul_i32 s26, s23, %d" % (CH * 8))
            A("s_add_u32 s26, s26, %d" % (8 * j))
            A("v_add_u32 v60, s26, v6")
            A("v_bfe_u32 v61, v60, 1, 3")
            A("v_xor_b32 v61, v61, v7")
            A("s_mul_i32 s27, s%d, %d" % (rs, rm))
            A("v_add_u32 v60, s27, v60")
            A("v_lshlrev_b32 v60, 12, v60")
            A("v_lshl_add_u32 v%d, v61, 4, v60" % (base + j))
    vL = vSB + CHB
    A("s_lshl_b32 s26, s34, 13")
    A("s_mul_i32 s27, s35, 10240")
    A("s_add_u32 s27, s27, %d" % ASZ)
    for h in range(2):
        A("v_add_u32 v60, %d, v3" % (h * 4))
        A("v_bfe_u32 v61, v2, 1, 3")
        A("v_xor_b32 v60, v60, v61")
        A("v_lshlrev_b32 v60, 4, v60")
        A("v_lshl_add_u32 v60, v2, 7, v60")
        for seg in range(3):
            A("v_add_u32 v61, 0x%x, v60" % (seg << 16))
            A("v_add_u32 v%d, s26, v61" % (vL + h * 3 + seg))
            A("v_add_u32 v%d, s27, v61" % (vL + 6 + h * 3 + seg))
    A("s_mul_i32 s28, s23, %d" % (CHA * 1024))
    A("s_mul_i32 s30, s23, %d" % (CHB * 1024))
    A("s_add_u32 s30, s30, %d" % ASZ)
    base = (vL + 12 + 3) // 4 * 4
    vAcc = base
    vBf = vAcc + TM * NT * 4
    vAf = vBf + 2 * NT * 4
    vend = vAf + 2 * TM * 4
    assert vend <= 256

    def acc(t, n):
        return vAcc + (t * NT + n) * 4

    def issue(stage):
        buf = stage % RING
        for j in range(CHA):
            A("s_add_u32 m0, s28, %d" % (buf * BUFSZ + j * 1024))
            A("s_nop 0")
            A("buffer_load_dwordx4 v%d, s[8:11], s29 offen lds" % (vSA + j))
        for j in range(CHB):
            A("s_add_u32 m0, s30, %d" % (buf * BUFSZ + j * 1024))
            A("s_nop 0")
            A("buffer_load_dwordx4 v%d, s[12:15], s29 offen lds" % (vSB + j))

    def reads(stage, h, st):
        buf = stage % RING
        for t in range(TM):
            r = vAf + (st * TM + t) * 4
            off = buf * BUFSZ + t * 2048
            A("ds_read_b128 v[%d:%d], v%d offset:%d" % (r, r + 3, vL + h * 3 + (off >> 16), off & 65535))
        for n in range(NT):
            r = vBf + (st * NT + n) * 4
            off = buf * BUFSZ + n * 2048
            A("ds_read_b128 v[%d:%d], v%d offset:%d" % (r, r + 3, vL + 6 + h * 3 + (off >> 16), off & 65535))

    def mfmas(st):
        for t in range(TM):
            for n in range(NT):
                a = acc(t, n)
                b = vBf + (st * NT + n) * 4
                r = vAf + (st * TM + t) * 4
                A("v_mfma_f32_16x16x32_bf16 v[%d:%d], v[%d:%d], v[%d:%d], v[%d:%d]" % (
                    a, a + 3, b, b + 3, r, r + 3, a, a + 3))

    LPS = CHA + CHB
    A("s_lshl_b32 s29, s32, 11")
    for s in range(PF):
        issue(s)
        A("s_add_u32 s29, s29, 128")
    A("s_mov_b32 s31, %d" % (NS // RING))
    for i in range(TM * NT * 4):
        A("v_mov_b32 v%d, 0" % (vAcc + i))
    A("s_waitcnt vmcnt(%d)" % (LPS * (PF - 1)))
    A("s_barrier")
    reads(0, 0, 0)
    L(name + "_loop")
    for s in range(RING):
        issue(s + PF)
        A("s_add_u32 s29, s29, 128")
        reads(s, 1, 1)
        A("s_waitcnt lgkmcnt(%d)" % (TM + NT))
        mfmas(0)
        A("s_waitcnt vmcnt(%d) lgkmcnt(0)" % (LPS * (PF - 1)))
        A("s_barrier")
        reads(s + 1, 0, 0)
        mfmas(1)
    A("s_sub_u32 s31, s31, 1")
    A("s_cmp_eq_u32 s31, 0")
    A("s_cbranch_scc0 %s_loop" % name)
    A("s_waitcnt vmcnt(0) lgkmcnt(0)")
    A("s_nop 7")
    A("s_nop 1")
    for t in range(TM):
        A("s_mov_b32 s26, %d" % (t * 16 * 2560))
        for n in range(NT):
            a = acc(t, n)
            A("buffer_store_dwordx4 v[%d:%d], v8, s[16:19], s26 offen offset:%d" % (a, a + 3, n * 64))
    L(name + "_done")
    end_kernel(name, vend)
    return RING * BUFSZ


def setup_g1():
    A("s_load_dwordx2 s[4:5], s[0:1], 24")
    A("s_load_dwordx2 s[6:7], s[0:1], 32")
    A("s_load_dwordx2 s[24:25], s[0:1], 96")
    A("s_and_b32 s20, s2, 15")
    A("s_lshr_b32 s26, s2, 4")
    A("s_and_b32 s21, s26, 7")
    A("s_lshr_b32 s22, s26, 3")
    A("s_waitcnt lgkmcnt(0)")
    A("s_cmp_eq_u32 s22, 0")
    A("s_cselect_b32 s4, s4, s6")
    A("s_cselect_b32 s5, s5, s7")
    srd(12, 4, D * D * 2)
    srd(8, 24, S * D * 2, XL_OFF if XL_OFF else None)
    A("s_mul_i32 s26, s22, 0x%x" % (D * S * 2))
    A("s_add_u32 s26, s26, 0x%x" % ABT_OFF)
    A("s_add_u32 s16, s24, s26")
    A("s_addc_u32 s17, s25, 0")
    A("s_mov_b32 s18, 0x%x" % (D * S * 2))
    A("s_mov_b32 s19, 0x00020000")


def setup_g2():
    A("s_load_dwordx2 s[4:5], s[0:1], 8")
    A("s_load_dwordx2 s[6:7], s[0:1], 16")
    A("s_load_dwordx2 s[24:25], s[0:1], 96")
    A("s_and_b32 s26, s2, 7")
    A("s_lshr_b32 s27, s2, 3")
    A("s_and_b32 s21, s27, 7")
    A("s_lshr_b32 s27, s27, 3")
    A("s_lshl_b32 s26, s26, 2")
    A("s_add_u32 s26, s26, s27")
    A("s_and_b32 s20, s26, 15")
    A("s_lshr_b32 s22, s26, 4")
    A("s_waitcnt lgkmcnt(0)")
    A("s_cmp_eq_u32 s22, 0")
    A("s_cselect_b32 s4, s4, s6")
    A("s_cselect_b32 s5, s5, s7")
    srd(8, 4, S * S * 2)
    A("s_mul_i32 s26, s22, 0x%x" % (D * S * 2))
    A("s_add_u32 s27, s26, 0x%x" % ABT_OFF)
    A("s_add_u32 s12, s24, s27")
    A("s_addc_u32 s13, s25, 0")
    A("s_mov_b32 s14, 0x%x" % (D * S * 2))
    A("s_mov_b32 s15, 0x00020000")
    A("s_add_u32 s27, s26, 0x%x" % Y_OFF)
    A("s_add_u32 s16, s24, s27")
    A("s_addc_u32 s17, s25, 0")
    A("s_mov_b32 s18, 0x%x" % (S * D * 2))
    A("s_mov_b32 s19, 0x00020000")


def k_ln2():
    name = "ln2_kernel"
    begin_kernel(name)
    A("s_cmp_ge_u32 s2, 512")
    A("s_cbranch_scc1 %s_done" % name)
    A("s_load_dwordx2 s[4:5], s[0:1], 0")
    A("s_load_dwordx2 s[6:7], s[0:1], 96")
    A("s_load_dwordx2 s[24:25], s[0:1], 48")
    A("s_load_dwordx2 s[26:27], s[0:1], 80")
    A("v_lshrrev_b32 v1, 6, v0")
    A("s_lshl_b32 s3, s2, 2")
    A("v_add_u32 v3, s3, v1")
    A("v_mul_u32_u24 v1, 1280, v3")
    A("v_and_b32 v2, 63, v0")
    A("v_lshl_add_u32 v1, v2, 2, v1")
    A("v_lshlrev_b32 v4, 2, v2")
    A("s_waitcnt lgkmcnt(0)")
    srd(8, 4, S * D * 2)
    srd(12, 6, WS_SIZE)
    srd(16, 24, D * 2)
    srd(28, 26, S * D * 2)
    A("v_lshlrev_b32 v5, 1, v1")
    for i in range(5):
        A("buffer_load_dword v%d, v1, s[8:11], 0 offen offset:%d" % (10 + i, i * 256))
        A("buffer_load_dword v%d, v4, s[16:19], 0 offen offset:%d" % (55 + i, i * 256))
    for p in range(4):
        A("s_mov_b32 s20, 0x%x" % (P_OFF + p * S * D * 4))
        for i in range(5):
            A("buffer_load_dwordx2 v[%d:%d], v5, s[12:15], s20 offen offset:%d" % (64 + p * 10 + 2 * i, 65 + p * 10 + 2 * i, i * 512))
    A("s_waitcnt vmcnt(0)")
    f = list(range(20, 30))
    q = list(range(30, 40))
    for i in range(5):
        A("v_add_f32 v60, v%d, v%d" % (64 + 2 * i, 84 + 2 * i))
        A("v_add_f32 v61, v%d, v%d" % (65 + 2 * i, 85 + 2 * i))
        A("v_cvt_pk_bf16_f32 v62, v60, v61")
        unpack(60, 61, 62)
        A("v_add_f32 v62, v%d, v%d" % (74 + 2 * i, 94 + 2 * i))
        A("v_add_f32 v63, v%d, v%d" % (75 + 2 * i, 95 + 2 * i))
        A("v_cvt_pk_bf16_f32 v46, v62, v63")
        unpack(62, 63, 46)
        A("v_sub_f32 v60, v60, v62")
        A("v_sub_f32 v61, v61, v63")
        A("v_cvt_pk_bf16_f32 v62, v60, v61")
        unpack(60, 61, 62)
        unpack(62, 63, 10 + i)
        A("v_add_f32 v60, v60, v62")
        A("v_add_f32 v61, v61, v63")
        A("v_cvt_pk_bf16_f32 v%d, v60, v61" % (15 + i))
        unpack(f[2 * i], f[2 * i + 1], 15 + i)
    layernorm10(f, q, [40, 41, 42, 43, 44, 45], 20)
    A("v_mov_b32 v40, 0")
    for i in range(5):
        unpack(60, 61, 55 + i)
        A("v_fmac_f32 v40, v60, v%d" % q[2 * i])
        A("v_fmac_f32 v40, v61, v%d" % q[2 * i + 1])
    wave_reduce("add_f32", 40, 20)
    A("v_mov_b32 v40, s20")
    A("v_cvt_pk_bf16_f32 v40, v40, v40")
    A("s_mov_b32 s20, 0x%x" % H_OFF)
    A("s_mov_b32 s21, 0x%x" % HL_OFF)
    for i in range(5):
        A("v_cvt_pk_bf16_f32 v%d, v%d, v%d" % (50 + i, q[2 * i], q[2 * i + 1]))
        A("v_add_f32 v60, v%d, v%d" % (f[2 * i], q[2 * i]))
        A("v_add_f32 v61, v%d, v%d" % (f[2 * i + 1], q[2 * i + 1]))
        A("v_cvt_pk_bf16_f32 v%d, v60, v61" % (10 + i))
        A("buffer_store_dword v%d, v1, s[28:31], 0 offen offset:%d" % (10 + i, i * 256))
        A("buffer_store_dword v%d, v1, s[12:15], s20 offen offset:%d" % (15 + i, i * 256))
        A("buffer_store_dword v%d, v1, s[12:15], s21 offen offset:%d" % (50 + i, i * 256))
    A("v_lshlrev_b32 v3, 1, v3")
    A("s_mov_b32 s20, 0x%x" % R_OFF)
    A("v_cmp_eq_u32 vcc, 0, v2")
    A("s_and_saveexec_b64 s[22:23], vcc")
    A("buffer_store_short v40, v3, s[12:15], s20 offen")
    L(name + "_done")
    end_kernel(name, 104)


def k_ffn1():
    name = "ffn1_kernel"
    begin_kernel(name)
    A("s_cmp_ge_u32 s2, 96")
    A("s_cbranch_scc1 %s_done" % name)
    A("s_load_dwordx2 s[4:5], s[0:1], 56")
    A("s_load_dwordx2 s[6:7], s[0:1], 64")
    A("s_load_dwordx2 s[24:25], s[0:1], 96")
    A("v_and_b32 v1, 63, v0")
    A("v_and_b32 v2, 15, v0")
    A("v_lshrrev_b32 v3, 4, v1")
    A("v_lshrrev_b32 v4, 6, v0")
    A("s_waitcnt lgkmcnt(0)")
    srd(8, 4, D * F * 2)
    srd(12, 6, D * F * 2)
    srd(16, 24, WS_SIZE)
    A("v_lshlrev_b32 v5, 4, v0")
    A("s_mov_b32 s20, 0x%x" % R_OFF)
    A("buffer_load_dwordx4 v[8:11], v5, s[16:19], s20 offen")
    A("v_mul_u32_u24 v5, 160, v4")
    A("v_lshl_add_u32 v5, v3, 3, v5")
    A("v_mul_u32_u24 v5, 3072, v5")
    A("s_lshl_b32 s20, s2, 4")
    A("v_add_u32 v6, s20, v2")
    A("v_lshl_add_u32 v5, v6, 1, v5")
    vG, vU = 64, 84
    rG, rU = 128, 168
    for step in range(5):
        for j in range(8):
            A("s_mov_b32 s20, %d" % ((step * 32 + j) * 3072))
            A("buffer_load_ushort v%d, v5, s[8:11], s20 offen" % (rG + step * 8 + j))
            A("buffer_load_ushort v%d, v5, s[12:15], s20 offen" % (rU + step * 8 + j))
    A("s_mov_b32 s21, 0x7fff")
    A("v_lshlrev_b32 v6, 3, v0")
    A("v_sub_u32 v6, 2047, v6")
    A("s_waitcnt vmcnt(63)")
    for i in range(8):
        d = 8 + i // 2
        if i & 1:
            A("v_lshrrev_b32 v20, 16, v%d" % d)
        else:
            A("v_and_b32 v20, 0xffff, v%d" % d)
        A("v_bfe_i32 v21, v20, 15, 1")
        A("v_and_b32 v21, s21, v21")
        A("v_or_b32 v21, 0x8000, v21")
        A("v_xor_b32 v20, v20, v21")
        A("v_subrev_u32 v21, %d, v6" % i)
        A("v_lshl_or_b32 v%d, v20, 11, v21" % (24 + i))
    for rnd in range(8):
        A("v_max3_u32 v20, v24, v25, v26")
        A("v_max3_u32 v20, v20, v27, v28")
        A("v_max3_u32 v20, v20, v29, v30")
        A("v_max_u32 v20, v20, v31")
        wave_reduce("max_u32", 20, 20)
        A("v_mov_b32 v20, s20")
        A("v_lshlrev_b32 v21, 2, v4")
        A("ds_write_b32 v21, v20 offset:%d" % (rnd * 16))
        A("s_waitcnt lgkmcnt(0)")
        A("s_barrier")
        A("v_mov_b32 v21, 0")
        A("ds_read_b128 v[32:35], v21 offset:%d" % (rnd * 16))
        A("s_waitcnt lgkmcnt(0)")
        A("v_max3_u32 v20, v32, v33, v34")
        A("v_max_u32 v20, v20, v35")
        for i in range(8):
            A("v_cmp_eq_u32 vcc, v20, v%d" % (24 + i))
            A("s_nop 1")
            A("v_cndmask_b32 v%d, v%d, 0, vcc" % (24 + i, 24 + i)) if False else None
            A("v_cndmask_b32_e64 v%d, v%d, 0, vcc" % (24 + i, 24 + i))
        A("v_and_b32 v21, 2047, v20")
        A("v_sub_u32 v21, 2047, v21")
        A("s_nop 0")
        A("v_readfirstlane_b32 s%d, v21" % (40 + rnd))
    A("v_and_b32 v20, 7, v1")
    A("v_mov_b32 v21, s40")
    for j in range(1, 8):
        A("v_cmp_eq_u32 vcc, %d, v20" % j)
        A("v_mov_b32 v22, s%d" % (40 + j))
        A("s_nop 0")
        A("v_cndmask_b32 v21, v21, v22, vcc")
    A("v_mul_u32_u24 v21, 1280, v21")
    A("v_mul_u32_u24 v22, 320, v4")
    A("v_add_u32 v21, v21, v22")
    A("v_lshl_add_u32 v21, v3, 4, v21")
    A("s_mov_b32 s20, 0x%x" % HL_OFF)
    vX = 104
    for step in range(5):
        A("buffer_load_dwordx4 v[%d:%d], v21, s[16:19], s20 offen offset:%d" % (vX + step * 4, vX + step * 4 + 3, step * 64))
    for i in range(8):
        A("v_mov_b32 v%d, 0" % (40 + i))
    A("s_waitcnt vmcnt(0)")
    for i in range(20):
        A("v_lshl_or_b32 v%d, v%d, 16, v%d" % (vG + i, rG + 2 * i + 1, rG + 2 * i))
        A("v_lshl_or_b32 v%d, v%d, 16, v%d" % (vU + i, rU + 2 * i + 1, rU + 2 * i))
    A("s_nop 1")
    for step in range(5):
        x = vX + step * 4
        A("v_mfma_f32_16x16x32_bf16 v[40:43], v[%d:%d], v[%d:%d], v[40:43]" % (x, x + 3, vG + step * 4, vG + step * 4 + 3))
        A("v_mfma_f32_16x16x32_bf16 v[44:47], v[%d:%d], v[%d:%d], v[44:47]" % (x, x + 3, vU + step * 4, vU + step * 4 + 3))
    A("s_nop 7")
    A("s_nop 1")
    A("v_lshlrev_b32 v20, 4, v1")
    A("v_lshl_add_u32 v20, v4, 11, v20")
    A("ds_write_b128 v20, v[40:43] offset:256")
    A("ds_write_b128 v20, v[44:47] offset:1280")
    A("s_waitcnt lgkmcnt(0)")
    A("s_barrier")
    A("v_cmp_gt_u32 vcc, 32, v0")
    A("s_and_saveexec_b64 s[22:23], vcc")
    A("s_cbranch_execz %s_done" % name)
    A("v_lshlrev_b32 v20, 4, v1")
    for w in range(1, 4):
        A("ds_read_b128 v[48:51], v20 offset:%d" % (256 + w * 2048))
        A("ds_read_b128 v[52:55], v20 offset:%d" % (1280 + w * 2048))
        A("s_waitcnt lgkmcnt(0)")
        for i in range(8):
            A("v_add_f32 v%d, v%d, v%d" % (40 + i, 40 + i, 48 + i))
    A("s_mov_b32 s20, 0x%x" % T_OFF)
    A("s_lshl_b32 s21, s2, 4")
    A("v_add_u32 v21, s21, v2")
    A("v_lshlrev_b32 v21, 1, v21")
    A("v_mul_u32_u24 v22, %d, v3" % (4 * 3072))
    A("v_add_u32 v21, v21, v22")
    for r in range(4):
        bf_round(40 + r, 40 + r)
        bf_round(44 + r, 44 + r)
        A("v_mul_f32 v48, 0xbfb8aa3b, v%d" % (40 + r))
        A("v_exp_f32 v48, v48")
        A("s_nop 0")
        A("v_add_f32 v48, 1.0, v48")
        A("v_rcp_f32 v48, v48")
        A("s_nop 0")
        A("v_mul_f32 v48, v48, v%d" % (40 + r))
        bf_round(48, 48)
        A("v_mul_f32 v48, v48, v%d" % (44 + r))
        A("v_cvt_pk_bf16_f32 v48, v48, v48")
        A("buffer_store_short v48, v21, s[16:19], s20 offen")
        A("v_add_u32 v21, 3072, v21")
    A("s_cmp_lg_u32 s2, 0")
    A("s_cbranch_scc1 %s_done" % name)
    A("v_cmp_eq_u32 vcc, 0, v0")
    A("s_and_saveexec_b64 s[22:23], vcc")
    for j in range(8):
        A("v_mov_b32 v%d, s%d" % (40 + j, 40 + j))
    A("v_mov_b32 v20, 0")
    A("s_mov_b32 s20, 0x%x" % IDX_OFF)
    A("buffer_store_dwordx4 v[40:43], v20, s[16:19], s20 offen")
    A("buffer_store_dwordx4 v[44:47], v20, s[16:19], s20 offen offset:16")
    L(name + "_done")
    end_kernel(name, 208)


def k_ffn2():
    name = "ffn2_kernel"
    begin_kernel(name)
    A("s_cmp_ge_u32 s2, 40")
    A("s_cbranch_scc1 %s_done" % name)
    A("s_load_dwordx2 s[4:5], s[0:1], 72")
    A("s_load_dwordx2 s[6:7], s[0:1], 80")
    A("s_load_dwordx2 s[24:25], s[0:1], 96")
    A("v_and_b32 v1, 63, v0")
    A("v_and_b32 v2, 15, v0")
    A("v_lshrrev_b32 v3, 4, v1")
    A("v_lshrrev_b32 v4, 6, v0")
    A("s_waitcnt lgkmcnt(0)")
    srd(8, 4, D * F * 2)
    srd(12, 6, S * D * 2)
    srd(16, 24, WS_SIZE)
    A("s_add_u32 s26, s24, 0x%x" % IDX_OFF)
    A("s_addc_u32 s27, s25, 0")
    A("s_load_dwordx8 s[40:47], s[26:27], 0")
    A("v_mul_u32_u24 v5, 384, v4")
    A("v_lshl_add_u32 v5, v3, 3, v5")
    A("v_mul_u32_u24 v5, 1280, v5")
    A("s_lshl_b32 s20, s2, 4")
    A("v_add_u32 v6, s20, v2")
    A("v_lshl_add_u32 v5, v6, 1, v5")
    vW = 64
    rW = 160
    for step in range(12):
        for j in range(8):
            A("s_mov_b32 s20, %d" % ((step * 32 + j) * 1280))
            A("buffer_load_ushort v%d, v5, s[8:11], s20 offen" % (rW + step * 8 + j))
    A("v_and_b32 v20, 7, v1")
    A("v_mul_u32_u24 v20, 3072, v20")
    A("v_mul_u32_u24 v21, 768, v4")
    A("v_add_u32 v20, v20, v21")
    A("v_lshl_add_u32 v20, v3, 4, v20")
    A("s_mov_b32 s20, 0x%x" % T_OFF)
    vX = 112
    for step in range(12):
        A("buffer_load_dwordx4 v[%d:%d], v20, s[16:19], s20 offen offset:%d" % (vX + step * 4, vX + step * 4 + 3, step * 64))
    for i in range(4):
        A("v_mov_b32 v%d, 0" % (40 + i))
    A("s_waitcnt vmcnt(0)")
    for i in range(48):
        A("v_lshl_or_b32 v%d, v%d, 16, v%d" % (vW + i, rW + 2 * i + 1, rW + 2 * i))
    A("s_nop 1")
    for step in range(12):
        x = vX + step * 4
        A("v_mfma_f32_16x16x32_bf16 v[40:43], v[%d:%d], v[%d:%d], v[40:43]" % (x, x + 3, vW + step * 4, vW + step * 4 + 3))
    A("s_nop 7")
    A("s_nop 1")
    A("v_lshlrev_b32 v20, 4, v1")
    A("v_lshl_add_u32 v20, v4, 10, v20")
    A("ds_write_b128 v20, v[40:43]")
    A("s_waitcnt lgkmcnt(0)")
    A("s_barrier")
    A("v_cmp_gt_u32 vcc, 32, v0")
    A("s_and_saveexec_b64 s[22:23], vcc")
    A("s_cbranch_execz %s_done" % name)
    A("v_lshlrev_b32 v20, 4, v1")
    for w in range(1, 4):
        A("ds_read_b128 v[48:51], v20 offset:%d" % (w * 1024))
        A("s_waitcnt lgkmcnt(0)")
        for i in range(4):
            A("v_add_f32 v%d, v%d, v%d" % (40 + i, 40 + i, 48 + i))
    A("v_cmp_eq_u32 vcc, 1, v3")
    A("s_mov_b32 s20, 0x%x" % R_OFF)
    A("s_mov_b32 s21, 0x%x" % H_OFF)
    A("s_mov_b32 s28, 0x%x" % HL_OFF)
    for r in range(4):
        A("v_mov_b32 v20, s%d" % (40 + r))
        A("v_mov_b32 v21, s%d" % (44 + r))
        A("v_cndmask_b32 v20, v20, v21, vcc")
        A("v_lshlrev_b32 v21, 1, v20")
        A("buffer_load_ushort v%d, v21, s[16:19], s20 offen" % (52 + r))
        A("v_mul_u32_u24 v20, 1280, v20")
        A("v_lshl_add_u32 v%d, v6, 1, v20" % (56 + r))
        A("buffer_load_ushort v%d, v%d, s[16:19], s21 offen" % (60 + r, 56 + r))
        A("buffer_load_ushort v%d, v%d, s[16:19], s28 offen" % (48 + r, 56 + r))
    A("s_waitcnt vmcnt(0)")
    for r in range(4):
        bf_round(40 + r, 40 + r)
        A("v_lshlrev_b32 v20, 16, v%d" % (52 + r))
        A("v_mul_f32 v20, 0xbfb8aa3b, v20")
        A("v_exp_f32 v20, v20")
        A("s_nop 0")
        A("v_add_f32 v20, 1.0, v20")
        A("v_rcp_f32 v20, v20")
        A("s_nop 0")
        bf_round(20, 20)
        A("v_mul_f32 v20, v20, v%d" % (40 + r))
        bf_round(20, 20)
        A("v_lshlrev_b32 v21, 16, v%d" % (48 + r))
        A("v_add_f32 v20, v20, v21")
        bf_round(20, 20)
        A("v_lshlrev_b32 v21, 16, v%d" % (60 + r))
        A("v_add_f32 v20, v20, v21")
        A("v_cvt_pk_bf16_f32 v20, v20, v20")
        A("buffer_store_short v20, v%d, s[12:15], 0 offen" % (56 + r))
    L(name + "_done")
    end_kernel(name, 256)


def main():
    hdr = open("cdna_kernels/%s.s.ref" % NAME).read().split("; @launch")[0]
    body_start = len(out)
    out.append('.amdgcn_target "amdgcn-amd-amdhsa--gfx950"')
    out.append(".text")
    k_lnx()
    lds1 = k_gemm("g1_kernel", 256, setup_g1, 1280, 1280, 4096, 640, 80, 3, True)
    lds2 = k_gemm2()
    k_ln2()
    k_ffn1()
    k_ffn2()
    launches = [
        "; @launch kernel=lnx_kernel grid=(512,1,1) block=(256,1,1) lds=0",
        "; @launch kernel=g1_kernel grid=(256,1,1) block=(256,1,1) lds=%d" % lds1,
        "; @launch kernel=g2_kernel grid=(256,1,1) block=(256,1,1) lds=%d" % lds2,
        "; @launch kernel=ln2_kernel grid=(512,1,1) block=(256,1,1) lds=0",
        "; @launch kernel=ffn1_kernel grid=(96,1,1) block=(256,1,1) lds=8448",
        "; @launch kernel=ffn2_kernel grid=(40,1,1) block=(256,1,1) lds=4096",
    ]
    txt = hdr + "\n".join(launches) + "\n" + "\n".join(out) + "\n"
    txt += '.section .rodata,"a"\n'
    for name, vgpr, sgpr in kds:
        acc = (vgpr + 3) // 4 * 4
        txt += ".p2align 6\n.amdhsa_kernel %s\n" % name
        txt += "  .amdhsa_next_free_vgpr %d\n  .amdhsa_next_free_sgpr %d\n  .amdhsa_accum_offset %d\n" % (vgpr, sgpr, acc)
        txt += "  .amdhsa_group_segment_fixed_size 0\n  .amdhsa_kernarg_size 104\n  .amdhsa_user_sgpr_count 2\n"
        txt += "  .amdhsa_user_sgpr_kernarg_segment_ptr 1\n  .amdhsa_system_sgpr_workgroup_id_x 1\n.end_amdhsa_kernel\n"
    dst = sys.argv[1] if len(sys.argv) > 1 else "cdna_kernels/%s.s" % NAME
    open(dst, "w").write(txt)


main()
```

```python
import sys, os
VAR = os.environ.get("VAR", "")

NAME = "sequential_preLN__spectral_fnet__moe_arch_mod__prompt"
S, D, F = 2048, 640, 1536
MB = 1 << 20
XL_OFF = 0
ABT_OFF = 4 * MB
Y_OFF = 12 * MB
H_OFF = 20 * MB
HL_OFF = 24 * MB
R_OFF = 28 * MB
IDX_OFF = R_OFF + 8192
T_OFF = R_OFF + 16384
WS_SIZE = 96 * MB

out = []


def A(s):
    out.append("    " + s)


def L(s):
    out.append(s + ":")


def begin_kernel(name):
    out.append(".globl %s" % name)
    out.append(".p2align 8")
    out.append(".type %s,@function" % name)
    out.append("%s:" % name)


kds = []


def end_kernel(name, vgpr, sgpr=102):
    A("s_endpgm")
    kds.append((name, vgpr, sgpr))


def srd(d, lo, nbytes, add=None):
    if add:
        A("s_add_u32 s%d, s%d, 0x%x" % (d, lo, add))
        A("s_addc_u32 s%d, s%d, 0" % (d + 1, lo + 1))
    else:
        A("s_mov_b32 s%d, s%d" % (d, lo))
        A("s_mov_b32 s%d, s%d" % (d + 1, lo + 1))
    A("s_mov_b32 s%d, 0x%x" % (d + 2, nbytes))
    A("s_mov_b32 s%d, 0x00020000" % (d + 3))


def wave_reduce(op, v, sdst):
    for m in ["quad_perm:[1,0,3,2] row_mask:0xf bank_mask:0xf",
              "quad_perm:[2,3,0,1] row_mask:0xf bank_mask:0xf",
              "row_half_mirror row_mask:0xf bank_mask:0xf",
              "row_mirror row_mask:0xf bank_mask:0xf",
              "row_bcast:15 row_mask:0xa bank_mask:0xf",
              "row_bcast:31 row_mask:0xc bank_mask:0xf"]:
        A("s_nop 1")
        A("v_%s_dpp v%d, v%d, v%d %s" % (op, v, v, v, m))
    A("s_nop 0")
    A("v_readlane_b32 s%d, v%d, 63" % (sdst, v))
    A("s_nop 1")


def bf_round(vd, vs):
    A("v_cvt_pk_bf16_f32 v%d, v%d, v%d" % (vd, vs, vs))
    A("v_lshlrev_b32 v%d, 16, v%d" % (vd, vd))


def unpack(vlo, vhi, vs):
    A("v_lshlrev_b32 v%d, 16, v%d" % (vlo, vs))
    A("v_and_b32 v%d, 0xffff0000, v%d" % (vhi, vs))


def layernorm10(f, q, t, sA):
    t0, t1, t2, t3, t4, t5 = t
    A("v_add_f32 v%d, v%d, v%d" % (t0, f[0], f[1]))
    for i in range(2, 10):
        A("v_add_f32 v%d, v%d, v%d" % (t0, t0, f[i]))
    wave_reduce("add_f32", t0, sA)
    A("v_mov_b32 v%d, s%d" % (t1, sA))
    A("v_mul_f32 v%d, 0x3acccccd, v%d" % (t1, t1))
    A("v_mov_b32 v%d, 0" % t2)
    for i in range(10):
        A("v_sub_f32 v%d, v%d, v%d" % (t3, f[i], t1))
        A("v_fmac_f32 v%d, v%d, v%d" % (t2, t3, t3))
    wave_reduce("add_f32", t2, sA)
    A("v_mov_b32 v%d, s%d" % (t2, sA))
    A("v_mul_f32 v%d, 0x3acccccd, v%d" % (t2, t2))
    bf_round(t1, t1)
    bf_round(t2, t2)
    A("v_add_f32 v%d, 0x3727c5ac, v%d" % (t2, t2))
    bf_round(t2, t2)
    A("v_sqrt_f32 v%d, v%d" % (t2, t2))
    A("s_nop 0")
    bf_round(t2, t2)
    A("v_rcp_f32 v%d, v%d" % (t3, t2))
    A("s_nop 0")
    for i in range(0, 10, 2):
        A("v_sub_f32 v%d, v%d, v%d" % (t4, f[i], t1))
        A("v_sub_f32 v%d, v%d, v%d" % (t5, f[i + 1], t1))
        A("v_cvt_pk_bf16_f32 v%d, v%d, v%d" % (t4, t4, t5))
        unpack(q[i], q[i + 1], t4)
    for i in range(10):
        A("v_mul_f32 v%d, v%d, v%d" % (t4, q[i], t3))
        A("v_fma_f32 v%d, -v%d, v%d, v%d" % (t5, t4, t2, q[i]))
        A("v_fma_f32 v%d, v%d, v%d, v%d" % (q[i], t5, t3, t4))
    for i in range(0, 10, 2):
        A("v_cvt_pk_bf16_f32 v%d, v%d, v%d" % (t4, q[i], q[i + 1]))
        unpack(q[i], q[i + 1], t4)


def k_lnx():
    name = "lnx_kernel"
    begin_kernel(name)
    A("s_cmp_ge_u32 s2, 512")
    A("s_cbranch_scc1 %s_done" % name)
    A("s_load_dwordx2 s[4:5], s[0:1], 0")
    A("s_load_dwordx2 s[6:7], s[0:1], 96")
    A("v_lshrrev_b32 v1, 6, v0")
    A("s_lshl_b32 s3, s2, 2")
    A("v_add_u32 v1, s3, v1")
    A("v_mul_u32_u24 v1, 1280, v1")
    A("v_and_b32 v2, 63, v0")
    A("v_lshl_add_u32 v1, v2, 2, v1")
    A("s_waitcnt lgkmcnt(0)")
    srd(8, 4, S * D * 2)
    srd(12, 6, S * D * 2, XL_OFF)
    for i in range(5):
        A("buffer_load_dword v%d, v1, s[8:11], 0 offen offset:%d" % (10 + i, i * 256))
    A("s_waitcnt vmcnt(0)")
    f = list(range(20, 30))
    q = list(range(30, 40))
    for i in range(5):
        unpack(f[2 * i], f[2 * i + 1], 10 + i)
    layernorm10(f, q, [40, 41, 42, 43, 44, 45], 20)
    for i in range(5):
        A("v_cvt_pk_bf16_f32 v%d, v%d, v%d" % (10 + i, q[2 * i], q[2 * i + 1]))
        A("buffer_store_dword v%d, v1, s[12:15], 0 offen offset:%d" % (10 + i, i * 256))
    L(name + "_done")
    end_kernel(name, 48)


def k_gemm(name, nwg, setup, pitchA, pitchB, pitchO, K, BN, RING, transposed):
    NT = BN // 16
    CHB = BN // 16
    CHA = 8
    NS = K // 128
    PF = RING - 1
    ASZ = 128 * 256
    BUFSZ = ASZ + BN * 256
    begin_kernel(name)
    A("s_cmp_ge_u32 s2, %d" % nwg)
    A("s_cbranch_scc1 %s_done" % name)
    A("v_and_b32 v1, 63, v0")
    A("v_and_b32 v2, 15, v0")
    A("v_lshrrev_b32 v3, 4, v1")
    A("v_lshrrev_b32 v4, 6, v0")
    A("s_nop 0")
    A("v_readfirstlane_b32 s23, v4")
    setup()
    A("s_lshl_b32 s26, s20, 7")
    A("s_lshl_b32 s27, s23, 5")
    A("s_add_u32 s26, s26, s27")
    if not transposed:
        A("v_add_u32 v5, s26, v2")
        A("s_mov_b32 s27, %d" % pitchO)
        A("v_mul_lo_u32 v8, v5, s27")
        A("s_mul_i32 s26, s21, %d" % (BN * 2))
        A("v_add_u32 v8, s26, v8")
        A("v_lshl_add_u32 v8, v3, 3, v8")
        A("v_add_u32 v9, %d, v8" % (16 * pitchO))
    else:
        A("s_mul_i32 s27, s21, %d" % BN)
        A("v_add_u32 v5, s27, v2")
        A("s_mov_b32 s27, %d" % pitchO)
        A("v_mul_lo_u32 v8, v5, s27")
        A("s_lshl_b32 s26, s26, 1")
        A("v_add_u32 v8, s26, v8")
        A("v_lshl_add_u32 v8, v3, 3, v8")
        A("v_add_u32 v9, 32, v8")
    vSA = 10
    vSB = vSA + CHA
    for (base, CH, rows_sgpr, rows_mul, pitch) in ((vSA, CHA, 20, 128, pitchA), (vSB, CHB, 21, BN, pitchB)):
        for j in range(CH):
            A("s_mul_i32 s26, s23, %d" % (CH * 4))
            A("s_add_u32 s26, s26, %d" % (4 * j))
            A("v_add_u32 v60, s26, v3")
            A("v_and_b32 v61, 15, v60")
            A("v_xor_b32 v61, v61, v2")
            A("s_mul_i32 s27, s%d, %d" % (rows_sgpr, rows_mul))
            A("v_add_u32 v60, s27, v60")
            A("s_mov_b32 s27, %d" % pitch)
            A("v_mul_lo_u32 v60, v60, s27")
            A("v_lshl_add_u32 v%d, v61, 4, v60" % (base + j))
    vL = vSB + CHB
    vLA = vL + 8
    A("s_lshl_b32 s26, s23, 13")
    for step in range(4):
        A("v_lshlrev_b32 v60, 1, v3")
        A("v_add_u32 v60, %d, v60" % ((step >> 1) * 8 + (step & 1)))
        A("v_xor_b32 v60, v60, v2")
        A("v_lshlrev_b32 v60, 4, v60")
        A("v_lshl_add_u32 v%d, v2, 8, v60" % (vL + step))
        A("v_add_u32 v%d, 0x10000, v%d" % (vL + 4 + step, vL + step))
        A("v_add_u32 v%d, s26, v%d" % (vLA + step, vL + step))
        A("v_add_u32 v%d, 0x10000, v%d" % (vLA + 4 + step, vLA + step))
    A("s_mul_i32 s28, s23, %d" % (CHA * 1024))
    A("s_mul_i32 s30, s23, %d" % (CHB * 1024))
    A("s_add_u32 s30, s30, %d" % ASZ)
    base = (vLA + 8 + 3) // 4 * 4
    vAcc = base
    vBf = vAcc + 2 * NT * 4
    vAf = vBf + 2 * NT * 4
    vend = vAf + 16
    assert vend <= 256, vend

    def acc(t, n):
        return vAcc + (t * NT + n) * 4

    def issue(stage):
        buf = stage % RING
        for j in range(CHA):
            A("s_add_u32 m0, s28, %d" % (buf * BUFSZ + j * 1024))
            A("s_nop 0")
            if "noa" not in VAR: A("buffer_load_dwordx4 v%d, s[8:11], s29 offen lds" % (vSA + j))
        for j in range(CHB):
            A("s_add_u32 m0, s30, %d" % (buf * BUFSZ + j * 1024))
            A("s_nop 0")
            if "nodma" not in VAR: A("buffer_load_dwordx4 v%d, s[12:15], s29 offen lds" % (vSB + j))

    def reads(stage, step, st):
        buf = stage % RING
        for t in range(2):
            r = vAf + (st * 2 + t) * 4
            off = buf * BUFSZ + t * 4096
            if "nods" not in VAR: A("ds_read_b128 v[%d:%d], v%d offset:%d" % (r, r + 3, vLA + step + (4 if off >= 65536 else 0), off & 65535))
        for n in range(NT):
            r = vBf + (st * NT + n) * 4
            off = buf * BUFSZ + ASZ + n * 4096
            hi = off >> 16
            assert hi <= 2
            if hi == 2:
                A("v_add_u32 v6, 0x10000, v%d" % (vL + 4 + step))
                if "nods" not in VAR: A("ds_read_b128 v[%d:%d], v6 offset:%d" % (r, r + 3, off & 65535))
            else:
                if "nods" not in VAR: A("ds_read_b128 v[%d:%d], v%d offset:%d" % (r, r + 3, vL + step + 4 * hi, off & 65535))

    def mfmas(stage, step, st):
        for t in range(2):
            for n in range(NT):
                a = acc(t, n)
                b = vBf + (st * NT + n) * 4
                r = vAf + (st * 2 + t) * 4
                x, y = (r, b) if transposed else (b, r)
                if "nomfma" not in VAR: A("v_mfma_f32_16x16x32_bf16 v[%d:%d], v[%d:%d], v[%d:%d], v[%d:%d]" % (
                    a, a + 3, x, x + 3, y, y + 3, a, a + 3))

    LPS = CHA + CHB
    A("s_mov_b32 s29, 0")
    for s in range(PF):
        issue(s)
        A("s_add_u32 s29, s29, 256")
    A("s_mov_b32 s31, %d" % NS)
    for i in range(2 * NT * 4):
        A("v_mov_b32 v%d, 0" % (vAcc + i))
    A("s_waitcnt vmcnt(%d)" % (LPS * (PF - 1)))
    A("s_barrier")
    st = 0
    reads(0, 0, st)
    L(name + "_loop")
    for s in range(RING):
        issue(s + PF)
        A("s_add_u32 s29, s29, 256")
        for step in range(4):
            if step < 3:
                reads(s, step + 1, st ^ 1)
                A("s_waitcnt lgkmcnt(%d)" % (NT + 2))
            else:
                A("s_waitcnt vmcnt(%d) lgkmcnt(0)" % (LPS * (PF - 1)))
                A("s_barrier")
                reads(s + 1, 0, st ^ 1)
            mfmas(s, step, st)
            st ^= 1
        A("s_sub_u32 s31, s31, 1")
        A("s_cmp_eq_u32 s31, 0")
        if s < RING - 1:
            A("s_cbranch_scc1 %s_exit" % name)
        else:
            A("s_cbranch_scc0 %s_loop" % name)
    L(name + "_exit")
    A("s_waitcnt vmcnt(0) lgkmcnt(0)")
    A("s_nop 7")
    A("s_nop 1")
    for t in range(2):
        for n in range(NT):
            a = acc(t, n)
            A("v_cvt_pk_bf16_f32 v%d, v%d, v%d" % (a, a, a + 1))
            A("v_cvt_pk_bf16_f32 v%d, v%d, v%d" % (a + 1, a + 2, a + 3))
            if not transposed:
                A("buffer_store_dwordx2 v[%d:%d], v%d, s[16:19], 0 offen offset:%d" % (a, a + 1, 8 + t, n * 32))
            else:
                A("s_mov_b32 s26, %d" % (n * 16 * pitchO))
                A("buffer_store_dwordx2 v[%d:%d], v%d, s[16:19], s26 offen" % (a, a + 1, 8 + t))
    L(name + "_done")
    end_kernel(name, vend)
    return RING * BUFSZ


P_OFF = 64 * MB


def k_gemm2():
    name = "g2_kernel"
    TM, NT, RING, PF, NS = 4, 5, 4, 3, 16
    CHA, CHB = 4, 5
    ASZ = 128 * 128
    BUFSZ = ASZ + 160 * 128
    begin_kernel(name)
    A("s_cmp_ge_u32 s2, 256")
    A("s_cbranch_scc1 %s_done" % name)
    A("s_load_dwordx2 s[4:5], s[0:1], 8")
    A("s_load_dwordx2 s[6:7], s[0:1], 16")
    A("s_load_dwordx2 s[24:25], s[0:1], 96")
    if "stamp" in VAR:
        A("s_load_dwordx2 s[92:93], s[0:1], 88")
        A("s_memtime s[70:71]")
        A("s_memrealtime s[80:81]")
    A("v_and_b32 v1, 63, v0")
    A("v_and_b32 v2, 15, v0")
    A("v_lshrrev_b32 v3, 4, v1")
    A("v_lshrrev_b32 v4, 6, v0")
    A("s_nop 0")
    A("v_readfirstlane_b32 s23, v4")
    A("s_and_b32 s26, s2, 7")
    A("s_lshr_b32 s27, s2, 3")
    A("s_and_b32 s21, s27, 3")
    A("s_lshr_b32 s27, s27, 2")
    A("s_lshl_b32 s26, s26, 3")
    A("s_add_u32 s26, s26, s27")
    A("s_and_b32 s20, s26, 15")
    A("s_lshr_b32 s33, s26, 4")
    A("s_and_b32 s22, s33, 1")
    A("s_lshr_b32 s32, s33, 1")
    A("s_waitcnt lgkmcnt(0)")
    A("s_cmp_eq_u32 s22, 0")
    A("s_cselect_b32 s4, s4, s6")
    A("s_cselect_b32 s5, s5, s7")
    srd(8, 4, S * S * 2)
    A("s_mul_i32 s26, s22, 0x%x" % (D * S * 2))
    A("s_add_u32 s27, s26, 0x%x" % ABT_OFF)
    A("s_add_u32 s12, s24, s27")
    A("s_addc_u32 s13, s25, 0")
    A("s_mov_b32 s14, 0x%x" % (D * S * 2))
    A("s_mov_b32 s15, 0x00020000")
    A("s_mul_i32 s26, s33, 0x%x" % (S * D * 4))
    A("s_add_u32 s27, s26, 0x%x" % P_OFF)
    A("s_add_u32 s16, s24, s27")
    A("s_addc_u32 s17, s25, 0")
    A("s_mov_b32 s18, 0x%x" % (S * D * 4))
    A("s_mov_b32 s19, 0x00020000")
    A("s_lshr_b32 s34, s23, 1")
    A("s_and_b32 s35, s23, 1")
    A("s_lshl_b32 s26, s20, 7")
    A("s_lshl_b32 s27, s34, 6")
    A("s_add_u32 s26, s26, s27")
    A("v_add_u32 v5, s26, v2")
    A("v_mul_u32_u24 v8, 2560, v5")
    A("s_mul_i32 s26, s21, 640")
    A("s_mul_i32 s27, s35, 320")
    A("s_add_u32 s26, s26, s27")
    A("v_add_u32 v8, s26, v8")
    A("v_lshl_add_u32 v8, v3, 4, v8")
    A("v_lshrrev_b32 v6, 3, v1")
    A("v_and_b32 v7, 7, v1")
    vSA = 10
    vSB = vSA + CHA
    for (base, CH, rs, rm) in ((vSA, CHA, 20, 128), (vSB, CHB, 21, 160)):
        for j in range(CH):
            A("s_mul_i32 s26, s23, %d" % (CH * 8))
            A("s_add_u32 s26, s26, %d" % (8 * j))
            A("v_add_u32 v60, s26, v6")
            A("v_bfe_u32 v61, v60, 1, 3")
            A("v_xor_b32 v61, v61, v7")
            A("s_mul_i32 s27, s%d, %d" % (rs, rm))
            A("v_add_u32 v60, s27, v60")
            A("v_lshlrev_b32 v60, 12, v60")
            A("v_lshl_add_u32 v%d, v61, 4, v60" % (base + j))
    vL = vSB + CHB
    A("s_lshl_b32 s26, s34, 13")
    A("s_mul_i32 s27, s35, 10240")
    A("s_add_u32 s27, s27, %d" % ASZ)
    for h in range(2):
        A("v_add_u32 v60, %d, v3" % (h * 4))
        A("v_bfe_u32 v61, v2, 1, 3")
        A("v_xor_b32 v60, v60, v61")
        A("v_lshlrev_b32 v60, 4, v60")
        A("v_lshl_add_u32 v60, v2, 7, v60")
        for seg in range(3):
            A("v_add_u32 v61, 0x%x, v60" % (seg << 16))
            A("v_add_u32 v%d, s26, v61" % (vL + h * 3 + seg))
            A("v_add_u32 v%d, s27, v61" % (vL + 6 + h * 3 + seg))
    A("s_mul_i32 s28, s23, %d" % (CHA * 1024))
    A("s_mul_i32 s30, s23, %d" % (CHB * 1024))
    A("s_add_u32 s30, s30, %d" % ASZ)
    base = (vL + 12 + 3) // 4 * 4
    vAcc = base
    vBf = vAcc + TM * NT * 4
    vAf = vBf + 2 * NT * 4
    vend = vAf + 2 * TM * 4
    assert vend <= 256

    def acc(t, n):
        return vAcc + (t * NT + n) * 4

    def issue_list(stage):
        buf = stage % RING
        l = []
        for j in range(CHA):
            l.append(["s_add_u32 m0, s28, %d" % (buf * BUFSZ + j * 1024), "s_nop 0",
                      "buffer_load_dwordx4 v%d, s[8:11], s29 offen lds" % (vSA + j)])
        for j in range(CHB):
            l.append(["s_add_u32 m0, s30, %d" % (buf * BUFSZ + j * 1024), "s_nop 0",
                      "buffer_load_dwordx4 v%d, s[12:15], s29 offen lds" % (vSB + j)])
        return l

    def issue(stage):
        for g in issue_list(stage):
            for x in g:
                A(x)

    def reads(stage, h, st):
        buf = stage % RING
        for t in range(TM):
            r = vAf + (st * TM + t) * 4
            off = buf * BUFSZ + t * 2048
            A("ds_read_b128 v[%d:%d], v%d offset:%d" % (r, r + 3, vL + h * 3 + (off >> 16), off & 65535))
        for n in range(NT):
            r = vBf + (st * NT + n) * 4
            off = buf * BUFSZ + n * 2048
            A("ds_read_b128 v[%d:%d], v%d offset:%d" % (r, r + 3, vL + 6 + h * 3 + (off >> 16), off & 65535))

    def mfmas(st, fill=()):
        fill = list(fill)
        cnt = 0
        for t in range(TM):
            for n in range(NT):
                cnt += 1
                if fill and cnt % 4 == 2:
                    for x in fill.pop(0):
                        A(x)
                a = acc(t, n)
                b = vBf + (st * NT + n) * 4
                r = vAf + (st * TM + t) * 4
                A("v_mfma_f32_16x16x32_bf16 v[%d:%d], v[%d:%d], v[%d:%d], v[%d:%d]" % (
                    a, a + 3, b, b + 3, r, r + 3, a, a + 3))

    LPS = CHA + CHB
    A("s_lshl_b32 s29, s32, 11")
    for s in range(PF):
        issue(s)
        A("s_add_u32 s29, s29, 128")
    A("s_mov_b32 s31, %d" % (NS // RING))
    for i in range(TM * NT * 4):
        A("v_mov_b32 v%d, 0" % (vAcc + i))
    A("s_waitcnt vmcnt(%d)" % (LPS * (PF - 1)))
    A("s_barrier")
    if "stamp" in VAR: A("s_memtime s[72:73]")
    reads(0, 0, 0)
    L(name + "_loop")
    for s in range(RING):
        il = issue_list(s + PF)
        reads(s, 1, 1)
        A("s_waitcnt lgkmcnt(%d)" % (TM + NT))
        mfmas(0, il[:5])
        for g in il[5:]:
            for x in g:
                A(x)
        A("s_add_u32 s29, s29, 128")
        A("s_waitcnt vmcnt(%d) lgkmcnt(0)" % (LPS * (PF - 1)))
        A("s_barrier")
        reads(s + 1, 0, 0)
        mfmas(1)
    A("s_sub_u32 s31, s31, 1")
    A("s_cmp_eq_u32 s31, 0")
    A("s_cbranch_scc0 %s_loop" % name)
    A("s_waitcnt vmcnt(0) lgkmcnt(0)")
    if "stamp" in VAR: A("s_memtime s[74:75]")
    A("s_nop 7")
    A("s_nop 1")
    A("s_barrier")
    A("s_mul_i32 s26, s23, %d" % (64 * 336))
    A("v_mul_u32_u24 v10, 336, v2")
    A("v_lshl_add_u32 v10, v3, 4, v10")
    A("v_add_u32 v10, s26, v10")
    for t in range(TM):
        for n in range(NT):
            a = acc(t, n)
            A("ds_write_b128 v10, v[%d:%d] offset:%d" % (a, a + 3, t * 16 * 336 + n * 64))
    A("s_mov_b32 s27, 0xccccccd")
    A("v_mul_hi_u32 v11, v1, s27")
    A("v_mul_u32_u24 v12, 20, v11")
    A("v_sub_u32 v12, v1, v12")
    A("s_lshl_b32 s27, s20, 7")
    A("s_lshl_b32 s36, s34, 6")
    A("s_add_u32 s27, s27, s36")
    A("s_mul_i32 s27, s27, 2560")
    A("s_mul_i32 s36, s21, 640")
    A("s_add_u32 s27, s27, s36")
    A("s_mul_i32 s36, s35, 320")
    A("s_add_u32 s27, s27, s36")
    A("s_waitcnt lgkmcnt(0)")
    for i in range(20):
        r = vAcc + i * 4
        A("v_mul_u32_u24 v13, 336, v11")
        A("v_lshl_add_u32 v13, v12, 4, v13")
        A("v_add_u32 v13, s26, v13")
        A("ds_read_b128 v[%d:%d], v13" % (r, r + 3))
        A("v_mul_u32_u24 v%d, 2560, v11" % (vBf + i))
        A("v_lshl_add_u32 v%d, v12, 4, v%d" % (vBf + i, vBf + i))
        A("v_add_u32 v11, 3, v11")
        A("v_add_u32 v12, 4, v12")
        A("v_cmp_le_u32 vcc, 20, v12")
        A("v_subrev_u32 v14, 20, v12")
        A("v_add_u32 v15, 1, v11")
        A("v_cndmask_b32 v12, v12, v14, vcc")
        A("v_cndmask_b32 v11, v11, v15, vcc")
    for i in range(20):
        r = vAcc + i * 4
        A("s_waitcnt lgkmcnt(%d)" % min(15, 19 - i))
        A("buffer_store_dwordx4 v[%d:%d], v%d, s[16:19], s27 offen" % (r, r + 3, vBf + i))
    if "stamp" in VAR:
        A("s_waitcnt vmcnt(0)")
        A("s_memtime s[76:77]")
        A("s_memrealtime s[82:83]")
        A("s_waitcnt lgkmcnt(0)")
        A("s_cmp_lg_u32 s2, 17")
        A("s_cbranch_scc1 %s_done" % name)
        A("s_mov_b32 s94, 256")
        A("s_mov_b32 s95, 0x00020000")
        A("s_sub_u32 s72, s72, s70")
        A("s_sub_u32 s74, s74, s70")
        A("s_sub_u32 s76, s76, s70")
        A("s_sub_u32 s82, s82, s80")
        A("v_mov_b32 v10, s72")
        A("v_mov_b32 v11, s74")
        A("v_mov_b32 v12, s76")
        A("v_mov_b32 v13, s82")
        A("v_mov_b32 v14, 0")
        A("buffer_store_dwordx4 v[10:13], v14, s[92:95], 0 offen")
    L(name + "_done")
    end_kernel(name, vend)
    return RING * BUFSZ


def setup_g1():
    A("s_load_dwordx2 s[4:5], s[0:1], 24")
    A("s_load_dwordx2 s[6:7], s[0:1], 32")
    A("s_load_dwordx2 s[24:25], s[0:1], 96")
    A("s_and_b32 s20, s2, 15")
    A("s_lshr_b32 s26, s2, 4")
    A("s_and_b32 s21, s26, 7")
    A("s_lshr_b32 s22, s26, 3")
    A("s_waitcnt lgkmcnt(0)")
    A("s_cmp_eq_u32 s22, 0")
    A("s_cselect_b32 s4, s4, s6")
    A("s_cselect_b32 s5, s5, s7")
    srd(12, 4, D * D * 2)
    srd(8, 24, S * D * 2, XL_OFF if XL_OFF else None)
    A("s_mul_i32 s26, s22, 0x%x" % (D * S * 2))
    A("s_add_u32 s26, s26, 0x%x" % ABT_OFF)
    A("s_add_u32 s16, s24, s26")
    A("s_addc_u32 s17, s25, 0")
    A("s_mov_b32 s18, 0x%x" % (D * S * 2))
    A("s_mov_b32 s19, 0x00020000")


def setup_g2():
    A("s_load_dwordx2 s[4:5], s[0:1], 8")
    A("s_load_dwordx2 s[6:7], s[0:1], 16")
    A("s_load_dwordx2 s[24:25], s[0:1], 96")
    A("s_and_b32 s26, s2, 7")
    A("s_lshr_b32 s27, s2, 3")
    A("s_and_b32 s21, s27, 7")
    A("s_lshr_b32 s27, s27, 3")
    A("s_lshl_b32 s26, s26, 2")
    A("s_add_u32 s26, s26, s27")
    A("s_and_b32 s20, s26, 15")
    A("s_lshr_b32 s22, s26, 4")
    A("s_waitcnt lgkmcnt(0)")
    A("s_cmp_eq_u32 s22, 0")
    A("s_cselect_b32 s4, s4, s6")
    A("s_cselect_b32 s5, s5, s7")
    srd(8, 4, S * S * 2)
    A("s_mul_i32 s26, s22, 0x%x" % (D * S * 2))
    A("s_add_u32 s27, s26, 0x%x" % ABT_OFF)
    A("s_add_u32 s12, s24, s27")
    A("s_addc_u32 s13, s25, 0")
    A("s_mov_b32 s14, 0x%x" % (D * S * 2))
    A("s_mov_b32 s15, 0x00020000")
    A("s_add_u32 s27, s26, 0x%x" % Y_OFF)
    A("s_add_u32 s16, s24, s27")
    A("s_addc_u32 s17, s25, 0")
    A("s_mov_b32 s18, 0x%x" % (S * D * 2))
    A("s_mov_b32 s19, 0x00020000")


def k_ln2():
    name = "ln2_kernel"
    begin_kernel(name)
    A("s_cmp_ge_u32 s2, 512")
    A("s_cbranch_scc1 %s_done" % name)
    A("s_load_dwordx2 s[4:5], s[0:1], 0")
    A("s_load_dwordx2 s[6:7], s[0:1], 96")
    A("s_load_dwordx2 s[24:25], s[0:1], 48")
    A("s_load_dwordx2 s[26:27], s[0:1], 80")
    A("v_lshrrev_b32 v1, 6, v0")
    A("s_lshl_b32 s3, s2, 2")
    A("v_add_u32 v3, s3, v1")
    A("v_mul_u32_u24 v1, 1280, v3")
    A("v_and_b32 v2, 63, v0")
    A("v_lshl_add_u32 v1, v2, 2, v1")
    A("v_lshlrev_b32 v4, 2, v2")
    A("s_waitcnt lgkmcnt(0)")
    srd(8, 4, S * D * 2)
    srd(12, 6, WS_SIZE)
    srd(16, 24, D * 2)
    srd(28, 26, S * D * 2)
    A("v_lshlrev_b32 v5, 1, v1")
    for i in range(5):
        A("buffer_load_dword v%d, v1, s[8:11], 0 offen offset:%d" % (10 + i, i * 256))
        A("buffer_load_dword v%d, v4, s[16:19], 0 offen offset:%d" % (55 + i, i * 256))
    for p in range(4):
        A("s_mov_b32 s20, 0x%x" % (P_OFF + p * S * D * 4))
        for i in range(5):
            A("buffer_load_dwordx2 v[%d:%d], v5, s[12:15], s20 offen offset:%d" % (64 + p * 10 + 2 * i, 65 + p * 10 + 2 * i, i * 512))
    A("s_waitcnt vmcnt(0)")
    f = list(range(20, 30))
    q = list(range(30, 40))
    for i in range(5):
        A("v_add_f32 v60, v%d, v%d" % (64 + 2 * i, 84 + 2 * i))
        A("v_add_f32 v61, v%d, v%d" % (65 + 2 * i, 85 + 2 * i))
        A("v_cvt_pk_bf16_f32 v62, v60, v61")
        unpack(60, 61, 62)
        A("v_add_f32 v62, v%d, v%d" % (74 + 2 * i, 94 + 2 * i))
        A("v_add_f32 v63, v%d, v%d" % (75 + 2 * i, 95 + 2 * i))
        A("v_cvt_pk_bf16_f32 v46, v62, v63")
        unpack(62, 63, 46)
        A("v_sub_f32 v60, v60, v62")
        A("v_sub_f32 v61, v61, v63")
        A("v_cvt_pk_bf16_f32 v62, v60, v61")
        unpack(60, 61, 62)
        unpack(62, 63, 10 + i)
        A("v_add_f32 v60, v60, v62")
        A("v_add_f32 v61, v61, v63")
        A("v_cvt_pk_bf16_f32 v%d, v60, v61" % (15 + i))
        unpack(f[2 * i], f[2 * i + 1], 15 + i)
    layernorm10(f, q, [40, 41, 42, 43, 44, 45], 20)
    A("v_mov_b32 v40, 0")
    for i in range(5):
        unpack(60, 61, 55 + i)
        A("v_fmac_f32 v40, v60, v%d" % q[2 * i])
        A("v_fmac_f32 v40, v61, v%d" % q[2 * i + 1])
    wave_reduce("add_f32", 40, 20)
    A("v_mov_b32 v40, s20")
    A("v_cvt_pk_bf16_f32 v40, v40, v40")
    A("s_mov_b32 s20, 0x%x" % H_OFF)
    A("s_mov_b32 s21, 0x%x" % HL_OFF)
    for i in range(5):
        A("v_cvt_pk_bf16_f32 v%d, v%d, v%d" % (50 + i, q[2 * i], q[2 * i + 1]))
        A("v_add_f32 v60, v%d, v%d" % (f[2 * i], q[2 * i]))
        A("v_add_f32 v61, v%d, v%d" % (f[2 * i + 1], q[2 * i + 1]))
        A("v_cvt_pk_bf16_f32 v%d, v60, v61" % (10 + i))
        A("buffer_store_dword v%d, v1, s[28:31], 0 offen offset:%d" % (10 + i, i * 256))
        A("buffer_store_dword v%d, v1, s[12:15], s20 offen offset:%d" % (15 + i, i * 256))
        A("buffer_store_dword v%d, v1, s[12:15], s21 offen offset:%d" % (50 + i, i * 256))
    A("v_lshlrev_b32 v3, 1, v3")
    A("s_mov_b32 s20, 0x%x" % R_OFF)
    A("v_cmp_eq_u32 vcc, 0, v2")
    A("s_and_saveexec_b64 s[22:23], vcc")
    A("buffer_store_short v40, v3, s[12:15], s20 offen")
    L(name + "_done")
    end_kernel(name, 104)


def k_ffn1():
    name = "ffn1_kernel"
    begin_kernel(name)
    A("s_cmp_ge_u32 s2, 96")
    A("s_cbranch_scc1 %s_done" % name)
    A("s_load_dwordx2 s[4:5], s[0:1], 56")
    A("s_load_dwordx2 s[6:7], s[0:1], 64")
    A("s_load_dwordx2 s[24:25], s[0:1], 96")
    A("v_and_b32 v1, 63, v0")
    A("v_and_b32 v2, 15, v0")
    A("v_lshrrev_b32 v3, 4, v1")
    A("v_lshrrev_b32 v4, 6, v0")
    A("s_waitcnt lgkmcnt(0)")
    srd(8, 4, D * F * 2)
    srd(12, 6, D * F * 2)
    srd(16, 24, WS_SIZE)
    A("v_lshlrev_b32 v5, 4, v0")
    A("s_mov_b32 s20, 0x%x" % R_OFF)
    A("buffer_load_dwordx4 v[8:11], v5, s[16:19], s20 offen")
    A("v_mul_u32_u24 v5, 160, v4")
    A("v_lshl_add_u32 v5, v3, 3, v5")
    A("v_mul_u32_u24 v5, 3072, v5")
    A("s_lshl_b32 s20, s2, 4")
    A("v_add_u32 v6, s20, v2")
    A("v_lshl_add_u32 v5, v6, 1, v5")
    vG, vU = 64, 84
    rG, rU = 128, 168
    for step in range(5):
        for j in range(8):
            A("s_mov_b32 s20, %d" % ((step * 32 + j) * 3072))
            A("buffer_load_ushort v%d, v5, s[8:11], s20 offen" % (rG + step * 8 + j))
            A("buffer_load_ushort v%d, v5, s[12:15], s20 offen" % (rU + step * 8 + j))
    A("s_mov_b32 s21, 0x7fff")
    A("v_lshlrev_b32 v6, 3, v0")
    A("v_sub_u32 v6, 2047, v6")
    A("s_waitcnt vmcnt(63)")
    for i in range(8):
        d = 8 + i // 2
        if i & 1:
            A("v_lshrrev_b32 v20, 16, v%d" % d)
        else:
            A("v_and_b32 v20, 0xffff, v%d" % d)
        A("v_bfe_i32 v21, v20, 15, 1")
        A("v_and_b32 v21, s21, v21")
        A("v_or_b32 v21, 0x8000, v21")
        A("v_xor_b32 v20, v20, v21")
        A("v_subrev_u32 v21, %d, v6" % i)
        A("v_lshl_or_b32 v%d, v20, 11, v21" % (24 + i))
    for rnd in range(8):
        A("v_max3_u32 v20, v24, v25, v26")
        A("v_max3_u32 v20, v20, v27, v28")
        A("v_max3_u32 v20, v20, v29, v30")
        A("v_max_u32 v20, v20, v31")
        wave_reduce("max_u32", 20, 20)
        A("v_mov_b32 v20, s20")
        A("v_lshlrev_b32 v21, 2, v4")
        A("ds_write_b32 v21, v20 offset:%d" % (rnd * 16))
        A("s_waitcnt lgkmcnt(0)")
        A("s_barrier")
        A("v_mov_b32 v21, 0")
        A("ds_read_b128 v[32:35], v21 offset:%d" % (rnd * 16))
        A("s_waitcnt lgkmcnt(0)")
        A("v_max3_u32 v20, v32, v33, v34")
        A("v_max_u32 v20, v20, v35")
        for i in range(8):
            A("v_cmp_eq_u32 vcc, v20, v%d" % (24 + i))
            A("s_nop 1")
            A("v_cndmask_b32 v%d, v%d, 0, vcc" % (24 + i, 24 + i)) if False else None
            A("v_cndmask_b32_e64 v%d, v%d, 0, vcc" % (24 + i, 24 + i))
        A("v_and_b32 v21, 2047, v20")
        A("v_sub_u32 v21, 2047, v21")
        A("s_nop 0")
        A("v_readfirstlane_b32 s%d, v21" % (40 + rnd))
    A("v_and_b32 v20, 7, v1")
    A("v_mov_b32 v21, s40")
    for j in range(1, 8):
        A("v_cmp_eq_u32 vcc, %d, v20" % j)
        A("v_mov_b32 v22, s%d" % (40 + j))
        A("s_nop 0")
        A("v_cndmask_b32 v21, v21, v22, vcc")
    A("v_mul_u32_u24 v21, 1280, v21")
    A("v_mul_u32_u24 v22, 320, v4")
    A("v_add_u32 v21, v21, v22")
    A("v_lshl_add_u32 v21, v3, 4, v21")
    A("s_mov_b32 s20, 0x%x" % HL_OFF)
    vX = 104
    for step in range(5):
        A("buffer_load_dwordx4 v[%d:%d], v21, s[16:19], s20 offen offset:%d" % (vX + step * 4, vX + step * 4 + 3, step * 64))
    for i in range(8):
        A("v_mov_b32 v%d, 0" % (40 + i))
    A("s_waitcnt vmcnt(0)")
    for i in range(20):
        A("v_lshl_or_b32 v%d, v%d, 16, v%d" % (vG + i, rG + 2 * i + 1, rG + 2 * i))
        A("v_lshl_or_b32 v%d, v%d, 16, v%d" % (vU + i, rU + 2 * i + 1, rU + 2 * i))
    A("s_nop 1")
    for step in range(5):
        x = vX + step * 4
        A("v_mfma_f32_16x16x32_bf16 v[40:43], v[%d:%d], v[%d:%d], v[40:43]" % (x, x + 3, vG + step * 4, vG + step * 4 + 3))
        A("v_mfma_f32_16x16x32_bf16 v[44:47], v[%d:%d], v[%d:%d], v[44:47]" % (x, x + 3, vU + step * 4, vU + step * 4 + 3))
    A("s_nop 7")
    A("s_nop 1")
    A("v_lshlrev_b32 v20, 4, v1")
    A("v_lshl_add_u32 v20, v4, 11, v20")
    A("ds_write_b128 v20, v[40:43] offset:256")
    A("ds_write_b128 v20, v[44:47] offset:1280")
    A("s_waitcnt lgkmcnt(0)")
    A("s_barrier")
    A("v_cmp_gt_u32 vcc, 32, v0")
    A("s_and_saveexec_b64 s[22:23], vcc")
    A("s_cbranch_execz %s_done" % name)
    A("v_lshlrev_b32 v20, 4, v1")
    for w in range(1, 4):
        A("ds_read_b128 v[48:51], v20 offset:%d" % (256 + w * 2048))
        A("ds_read_b128 v[52:55], v20 offset:%d" % (1280 + w * 2048))
        A("s_waitcnt lgkmcnt(0)")
        for i in range(8):
            A("v_add_f32 v%d, v%d, v%d" % (40 + i, 40 + i, 48 + i))
    A("s_mov_b32 s20, 0x%x" % T_OFF)
    A("s_lshl_b32 s21, s2, 4")
    A("v_add_u32 v21, s21, v2")
    A("v_lshlrev_b32 v21, 1, v21")
    A("v_mul_u32_u24 v22, %d, v3" % (4 * 3072))
    A("v_add_u32 v21, v21, v22")
    for r in range(4):
        bf_round(40 + r, 40 + r)
        bf_round(44 + r, 44 + r)
        A("v_mul_f32 v48, 0xbfb8aa3b, v%d" % (40 + r))
        A("v_exp_f32 v48, v48")
        A("s_nop 0")
        A("v_add_f32 v48, 1.0, v48")
        A("v_rcp_f32 v48, v48")
        A("s_nop 0")
        A("v_mul_f32 v48, v48, v%d" % (40 + r))
        bf_round(48, 48)
        A("v_mul_f32 v48, v48, v%d" % (44 + r))
        A("v_cvt_pk_bf16_f32 v48, v48, v48")
        A("buffer_store_short v48, v21, s[16:19], s20 offen")
        A("v_add_u32 v21, 3072, v21")
    A("s_cmp_lg_u32 s2, 0")
    A("s_cbranch_scc1 %s_done" % name)
    A("v_cmp_eq_u32 vcc, 0, v0")
    A("s_and_saveexec_b64 s[22:23], vcc")
    for j in range(8):
        A("v_mov_b32 v%d, s%d" % (40 + j, 40 + j))
    A("v_mov_b32 v20, 0")
    A("s_mov_b32 s20, 0x%x" % IDX_OFF)
    A("buffer_store_dwordx4 v[40:43], v20, s[16:19], s20 offen")
    A("buffer_store_dwordx4 v[44:47], v20, s[16:19], s20 offen offset:16")
    L(name + "_done")
    end_kernel(name, 208)


def k_ffn2():
    name = "ffn2_kernel"
    begin_kernel(name)
    A("s_cmp_ge_u32 s2, 40")
    A("s_cbranch_scc1 %s_done" % name)
    A("s_load_dwordx2 s[4:5], s[0:1], 72")
    A("s_load_dwordx2 s[6:7], s[0:1], 80")
    A("s_load_dwordx2 s[24:25], s[0:1], 96")
    A("v_and_b32 v1, 63, v0")
    A("v_and_b32 v2, 15, v0")
    A("v_lshrrev_b32 v3, 4, v1")
    A("v_lshrrev_b32 v4, 6, v0")
    A("s_waitcnt lgkmcnt(0)")
    srd(8, 4, D * F * 2)
    srd(12, 6, S * D * 2)
    srd(16, 24, WS_SIZE)
    A("s_add_u32 s26, s24, 0x%x" % IDX_OFF)
    A("s_addc_u32 s27, s25, 0")
    A("s_load_dwordx8 s[40:47], s[26:27], 0")
    A("v_mul_u32_u24 v5, 384, v4")
    A("v_lshl_add_u32 v5, v3, 3, v5")
    A("v_mul_u32_u24 v5, 1280, v5")
    A("s_lshl_b32 s20, s2, 4")
    A("v_add_u32 v6, s20, v2")
    A("v_lshl_add_u32 v5, v6, 1, v5")
    vW = 64
    rW = 160
    for step in range(12):
        for j in range(8):
            A("s_mov_b32 s20, %d" % ((step * 32 + j) * 1280))
            A("buffer_load_ushort v%d, v5, s[8:11], s20 offen" % (rW + step * 8 + j))
    A("v_and_b32 v20, 7, v1")
    A("v_mul_u32_u24 v20, 3072, v20")
    A("v_mul_u32_u24 v21, 768, v4")
    A("v_add_u32 v20, v20, v21")
    A("v_lshl_add_u32 v20, v3, 4, v20")
    A("s_mov_b32 s20, 0x%x" % T_OFF)
    vX = 112
    for step in range(12):
        A("buffer_load_dwordx4 v[%d:%d], v20, s[16:19], s20 offen offset:%d" % (vX + step * 4, vX + step * 4 + 3, step * 64))
    A("s_waitcnt lgkmcnt(0)")
    A("v_cmp_eq_u32 vcc, 1, v3")
    A("s_mov_b32 s20, 0x%x" % R_OFF)
    A("s_mov_b32 s21, 0x%x" % H_OFF)
    A("s_mov_b32 s28, 0x%x" % HL_OFF)
    for r in range(4):
        A("v_mov_b32 v20, s%d" % (40 + r))
        A("v_mov_b32 v21, s%d" % (44 + r))
        A("v_cndmask_b32 v20, v20, v21, vcc")
        A("v_lshlrev_b32 v21, 1, v20")
        A("buffer_load_ushort v%d, v21, s[16:19], s20 offen" % (24 + r))
        A("v_mul_u32_u24 v20, 1280, v20")
        A("v_lshl_add_u32 v%d, v6, 1, v20" % (28 + r))
        A("buffer_load_ushort v%d, v%d, s[16:19], s21 offen" % (32 + r, 28 + r))
        A("buffer_load_ushort v%d, v%d, s[16:19], s28 offen" % (36 + r, 28 + r))
    for i in range(4):
        A("v_mov_b32 v%d, 0" % (40 + i))
    A("s_waitcnt vmcnt(0)")
    for i in range(48):
        A("v_lshl_or_b32 v%d, v%d, 16, v%d" % (vW + i, rW + 2 * i + 1, rW + 2 * i))
    A("s_nop 1")
    for step in range(12):
        x = vX + step * 4
        A("v_mfma_f32_16x16x32_bf16 v[40:43], v[%d:%d], v[%d:%d], v[40:43]" % (x, x + 3, vW + step * 4, vW + step * 4 + 3))
    A("s_nop 7")
    A("s_nop 1")
    A("v_lshlrev_b32 v20, 4, v1")
    A("v_lshl_add_u32 v20, v4, 10, v20")
    A("ds_write_b128 v20, v[40:43]")
    A("s_waitcnt lgkmcnt(0)")
    A("s_barrier")
    A("v_cmp_gt_u32 vcc, 32, v0")
    A("s_and_saveexec_b64 s[22:23], vcc")
    A("s_cbranch_execz %s_done" % name)
    A("v_lshlrev_b32 v20, 4, v1")
    for w in range(1, 4):
        A("ds_read_b128 v[48:51], v20 offset:%d" % (w * 1024))
        A("s_waitcnt lgkmcnt(0)")
        for i in range(4):
            A("v_add_f32 v%d, v%d, v%d" % (40 + i, 40 + i, 48 + i))
    A("s_waitcnt vmcnt(0)")
    for r in range(4):
        bf_round(40 + r, 40 + r)
        A("v_lshlrev_b32 v20, 16, v%d" % (24 + r))
        A("v_mul_f32 v20, 0xbfb8aa3b, v20")
        A("v_exp_f32 v20, v20")
        A("s_nop 0")
        A("v_add_f32 v20, 1.0, v20")
        A("v_rcp_f32 v20, v20")
        A("s_nop 0")
        bf_round(20, 20)
        A("v_mul_f32 v20, v20, v%d" % (40 + r))
        bf_round(20, 20)
        A("v_lshlrev_b32 v21, 16, v%d" % (36 + r))
        A("v_add_f32 v20, v20, v21")
        bf_round(20, 20)
        A("v_lshlrev_b32 v21, 16, v%d" % (32 + r))
        A("v_add_f32 v20, v20, v21")
        A("v_cvt_pk_bf16_f32 v20, v20, v20")
        A("buffer_store_short v20, v%d, s[12:15], 0 offen" % (28 + r))
    L(name + "_done")
    end_kernel(name, 256)


def main():
    hdr = open("cdna_kernels/%s.s.ref" % NAME).read().split("; @launch")[0]
    body_start = len(out)
    out.append('.amdgcn_target "amdgcn-amd-amdhsa--gfx950"')
    out.append(".text")
    k_lnx()
    lds1 = k_gemm("g1_kernel", 256, setup_g1, 1280, 1280, 4096, 640, 80, 3, True)
    lds2 = k_gemm2()
    k_ln2()
    k_ffn1()
    k_ffn2()
    launches = [
        "; @launch kernel=lnx_kernel grid=(512,1,1) block=(256,1,1) lds=0",
        "; @launch kernel=g1_kernel grid=(256,1,1) block=(256,1,1) lds=%d" % lds1,
        "; @launch kernel=g2_kernel grid=(256,1,1) block=(256,1,1) lds=%d" % lds2,
        "; @launch kernel=ln2_kernel grid=(512,1,1) block=(256,1,1) lds=0",
        "; @launch kernel=ffn1_kernel grid=(96,1,1) block=(256,1,1) lds=8448",
        "; @launch kernel=ffn2_kernel grid=(40,1,1) block=(256,1,1) lds=4096",
    ]
    txt = hdr + "\n".join(launches) + "\n" + "\n".join(out) + "\n"
    txt += '.section .rodata,"a"\n'
    for name, vgpr, sgpr in kds:
        acc = (vgpr + 3) // 4 * 4
        txt += ".p2align 6\n.amdhsa_kernel %s\n" % name
        txt += "  .amdhsa_next_free_vgpr %d\n  .amdhsa_next_free_sgpr %d\n  .amdhsa_accum_offset %d\n" % (vgpr, sgpr, acc)
        txt += "  .amdhsa_group_segment_fixed_size 0\n  .amdhsa_kernarg_size 104\n  .amdhsa_user_sgpr_count 2\n"
        txt += "  .amdhsa_user_sgpr_kernarg_segment_ptr 1\n  .amdhsa_system_sgpr_workgroup_id_x 1\n.end_amdhsa_kernel\n"
    dst = sys.argv[1] if len(sys.argv) > 1 else "cdna_kernels/%s.s" % NAME
    open(dst, "w").write(txt)


main()
```

```python
import sys, os
VAR = os.environ.get("VAR", "")

NAME = "sequential_preLN__spectral_fnet__moe_arch_mod__prompt"
S, D, F = 2048, 640, 1536
MB = 1 << 20
XL_OFF = 0
ABT_OFF = 4 * MB
Y_OFF = 12 * MB
H_OFF = 20 * MB
HL_OFF = 24 * MB
R_OFF = 28 * MB
IDX_OFF = R_OFF + 8192
T_OFF = R_OFF + 16384
ACC_OFF = R_OFF + 65536
WS_SIZE = 96 * MB

out = []


def A(s):
    out.append("    " + s)


def L(s):
    out.append(s + ":")


def begin_kernel(name):
    out.append(".globl %s" % name)
    out.append(".p2align 8")
    out.append(".type %s,@function" % name)
    out.append("%s:" % name)


kds = []


def end_kernel(name, vgpr, sgpr=102):
    A("s_endpgm")
    kds.append((name, vgpr, sgpr))


def srd(d, lo, nbytes, add=None):
    if add:
        A("s_add_u32 s%d, s%d, 0x%x" % (d, lo, add))
        A("s_addc_u32 s%d, s%d, 0" % (d + 1, lo + 1))
    else:
        A("s_mov_b32 s%d, s%d" % (d, lo))
        A("s_mov_b32 s%d, s%d" % (d + 1, lo + 1))
    A("s_mov_b32 s%d, 0x%x" % (d + 2, nbytes))
    A("s_mov_b32 s%d, 0x00020000" % (d + 3))


def wave_reduce(op, v, sdst):
    for m in ["quad_perm:[1,0,3,2] row_mask:0xf bank_mask:0xf",
              "quad_perm:[2,3,0,1] row_mask:0xf bank_mask:0xf",
              "row_half_mirror row_mask:0xf bank_mask:0xf",
              "row_mirror row_mask:0xf bank_mask:0xf",
              "row_bcast:15 row_mask:0xa bank_mask:0xf",
              "row_bcast:31 row_mask:0xc bank_mask:0xf"]:
        A("s_nop 1")
        A("v_%s_dpp v%d, v%d, v%d %s" % (op, v, v, v, m))
    A("s_nop 0")
    A("v_readlane_b32 s%d, v%d, 63" % (sdst, v))
    A("s_nop 1")


def bf_round(vd, vs):
    A("v_cvt_pk_bf16_f32 v%d, v%d, v%d" % (vd, vs, vs))
    A("v_lshlrev_b32 v%d, 16, v%d" % (vd, vd))


def unpack(vlo, vhi, vs):
    A("v_lshlrev_b32 v%d, 16, v%d" % (vlo, vs))
    A("v_and_b32 v%d, 0xffff0000, v%d" % (vhi, vs))


def layernorm10(f, q, t, sA):
    t0, t1, t2, t3, t4, t5 = t
    A("v_add_f32 v%d, v%d, v%d" % (t0, f[0], f[1]))
    for i in range(2, 10):
        A("v_add_f32 v%d, v%d, v%d" % (t0, t0, f[i]))
    wave_reduce("add_f32", t0, sA)
    A("v_mov_b32 v%d, s%d" % (t1, sA))
    A("v_mul_f32 v%d, 0x3acccccd, v%d" % (t1, t1))
    A("v_mov_b32 v%d, 0" % t2)
    for i in range(10):
        A("v_sub_f32 v%d, v%d, v%d" % (t3, f[i], t1))
        A("v_fmac_f32 v%d, v%d, v%d" % (t2, t3, t3))
    wave_reduce("add_f32", t2, sA)
    A("v_mov_b32 v%d, s%d" % (t2, sA))
    A("v_mul_f32 v%d, 0x3acccccd, v%d" % (t2, t2))
    bf_round(t1, t1)
    bf_round(t2, t2)
    A("v_add_f32 v%d, 0x3727c5ac, v%d" % (t2, t2))
    bf_round(t2, t2)
    A("v_sqrt_f32 v%d, v%d" % (t2, t2))
    A("s_nop 0")
    bf_round(t2, t2)
    A("v_rcp_f32 v%d, v%d" % (t3, t2))
    A("s_nop 0")
    for i in range(0, 10, 2):
        A("v_sub_f32 v%d, v%d, v%d" % (t4, f[i], t1))
        A("v_sub_f32 v%d, v%d, v%d" % (t5, f[i + 1], t1))
        A("v_cvt_pk_bf16_f32 v%d, v%d, v%d" % (t4, t4, t5))
        unpack(q[i], q[i + 1], t4)
    for i in range(10):
        A("v_mul_f32 v%d, v%d, v%d" % (t4, q[i], t3))
        A("v_fma_f32 v%d, -v%d, v%d, v%d" % (t5, t4, t2, q[i]))
        A("v_fma_f32 v%d, v%d, v%d, v%d" % (q[i], t5, t3, t4))
    for i in range(0, 10, 2):
        A("v_cvt_pk_bf16_f32 v%d, v%d, v%d" % (t4, q[i], q[i + 1]))
        unpack(q[i], q[i + 1], t4)


def k_lnx():
    name = "lnx_kernel"
    begin_kernel(name)
    A("s_cmp_ge_u32 s2, 512")
    A("s_cbranch_scc1 %s_done" % name)
    A("s_load_dwordx2 s[4:5], s[0:1], 0")
    A("s_load_dwordx2 s[6:7], s[0:1], 96")
    A("v_lshrrev_b32 v1, 6, v0")
    A("s_lshl_b32 s3, s2, 2")
    A("v_add_u32 v1, s3, v1")
    A("v_mul_u32_u24 v1, 1280, v1")
    A("v_and_b32 v2, 63, v0")
    A("v_lshl_add_u32 v1, v2, 2, v1")
    A("s_waitcnt lgkmcnt(0)")
    srd(8, 4, S * D * 2)
    srd(12, 6, S * D * 2, XL_OFF)
    for i in range(5):
        A("buffer_load_dword v%d, v1, s[8:11], 0 offen offset:%d" % (10 + i, i * 256))
    A("s_waitcnt vmcnt(0)")
    f = list(range(20, 30))
    q = list(range(30, 40))
    for i in range(5):
        unpack(f[2 * i], f[2 * i + 1], 10 + i)
    layernorm10(f, q, [40, 41, 42, 43, 44, 45], 20)
    for i in range(5):
        A("v_cvt_pk_bf16_f32 v%d, v%d, v%d" % (10 + i, q[2 * i], q[2 * i + 1]))
        A("buffer_store_dword v%d, v1, s[12:15], 0 offen offset:%d" % (10 + i, i * 256))
    L(name + "_done")
    end_kernel(name, 48)


def k_gemm(name, nwg, setup, pitchA, pitchB, pitchO, K, BN, RING, transposed):
    NT = BN // 16
    CHB = BN // 16
    CHA = 8
    NS = K // 128
    PF = RING - 1
    ASZ = 128 * 256
    BUFSZ = ASZ + BN * 256
    begin_kernel(name)
    A("s_cmp_ge_u32 s2, %d" % nwg)
    A("s_cbranch_scc1 %s_done" % name)
    A("v_and_b32 v1, 63, v0")
    A("v_and_b32 v2, 15, v0")
    A("v_lshrrev_b32 v3, 4, v1")
    A("v_lshrrev_b32 v4, 6, v0")
    A("s_nop 0")
    A("v_readfirstlane_b32 s23, v4")
    setup()
    A("s_lshl_b32 s26, s20, 7")
    A("s_lshl_b32 s27, s23, 5")
    A("s_add_u32 s26, s26, s27")
    if not transposed:
        A("v_add_u32 v5, s26, v2")
        A("s_mov_b32 s27, %d" % pitchO)
        A("v_mul_lo_u32 v8, v5, s27")
        A("s_mul_i32 s26, s21, %d" % (BN * 2))
        A("v_add_u32 v8, s26, v8")
        A("v_lshl_add_u32 v8, v3, 3, v8")
        A("v_add_u32 v9, %d, v8" % (16 * pitchO))
    else:
        A("s_mul_i32 s27, s21, %d" % BN)
        A("v_add_u32 v5, s27, v2")
        A("s_mov_b32 s27, %d" % pitchO)
        A("v_mul_lo_u32 v8, v5, s27")
        A("s_lshl_b32 s26, s26, 1")
        A("v_add_u32 v8, s26, v8")
        A("v_lshl_add_u32 v8, v3, 3, v8")
        A("v_add_u32 v9, 32, v8")
    vSA = 10
    vSB = vSA + CHA
    for (base, CH, rows_sgpr, rows_mul, pitch) in ((vSA, CHA, 20, 128, pitchA), (vSB, CHB, 21, BN, pitchB)):
        for j in range(CH):
            A("s_mul_i32 s26, s23, %d" % (CH * 4))
            A("s_add_u32 s26, s26, %d" % (4 * j))
            A("v_add_u32 v60, s26, v3")
            A("v_and_b32 v61, 15, v60")
            A("v_xor_b32 v61, v61, v2")
            A("s_mul_i32 s27, s%d, %d" % (rows_sgpr, rows_mul))
            A("v_add_u32 v60, s27, v60")
            A("s_mov_b32 s27, %d" % pitch)
            A("v_mul_lo_u32 v60, v60, s27")
            A("v_lshl_add_u32 v%d, v61, 4, v60" % (base + j))
    vL = vSB + CHB
    vLA = vL + 8
    A("s_lshl_b32 s26, s23, 13")
    for step in range(4):
        A("v_lshlrev_b32 v60, 1, v3")
        A("v_add_u32 v60, %d, v60" % ((step >> 1) * 8 + (step & 1)))
        A("v_xor_b32 v60, v60, v2")
        A("v_lshlrev_b32 v60, 4, v60")
        A("v_lshl_add_u32 v%d, v2, 8, v60" % (vL + step))
        A("v_add_u32 v%d, 0x10000, v%d" % (vL + 4 + step, vL + step))
        A("v_add_u32 v%d, s26, v%d" % (vLA + step, vL + step))
        A("v_add_u32 v%d, 0x10000, v%d" % (vLA + 4 + step, vLA + step))
    A("s_mul_i32 s28, s23, %d" % (CHA * 1024))
    A("s_mul_i32 s30, s23, %d" % (CHB * 1024))
    A("s_add_u32 s30, s30, %d" % ASZ)
    base = (vLA + 8 + 3) // 4 * 4
    vAcc = base
    vBf = vAcc + 2 * NT * 4
    vAf = vBf + 2 * NT * 4
    vend = vAf + 16
    assert vend <= 256, vend

    def acc(t, n):
        return vAcc + (t * NT + n) * 4

    def issue(stage):
        buf = stage % RING
        for j in range(CHA):
            A("s_add_u32 m0, s28, %d" % (buf * BUFSZ + j * 1024))
            A("s_nop 0")
            if "noa" not in VAR: A("buffer_load_dwordx4 v%d, s[8:11], s29 offen lds" % (vSA + j))
        for j in range(CHB):
            A("s_add_u32 m0, s30, %d" % (buf * BUFSZ + j * 1024))
            A("s_nop 0")
            if "nodma" not in VAR: A("buffer_load_dwordx4 v%d, s[12:15], s29 offen lds" % (vSB + j))

    def reads(stage, step, st):
        buf = stage % RING
        for t in range(2):
            r = vAf + (st * 2 + t) * 4
            off = buf * BUFSZ + t * 4096
            if "nods" not in VAR: A("ds_read_b128 v[%d:%d], v%d offset:%d" % (r, r + 3, vLA + step + (4 if off >= 65536 else 0), off & 65535))
        for n in range(NT):
            r = vBf + (st * NT + n) * 4
            off = buf * BUFSZ + ASZ + n * 4096
            hi = off >> 16
            assert hi <= 2
            if hi == 2:
                A("v_add_u32 v6, 0x10000, v%d" % (vL + 4 + step))
                if "nods" not in VAR: A("ds_read_b128 v[%d:%d], v6 offset:%d" % (r, r + 3, off & 65535))
            else:
                if "nods" not in VAR: A("ds_read_b128 v[%d:%d], v%d offset:%d" % (r, r + 3, vL + step + 4 * hi, off & 65535))

    def mfmas(stage, step, st):
        for t in range(2):
            for n in range(NT):
                a = acc(t, n)
                b = vBf + (st * NT + n) * 4
                r = vAf + (st * 2 + t) * 4
                x, y = (r, b) if transposed else (b, r)
                if "nomfma" not in VAR: A("v_mfma_f32_16x16x32_bf16 v[%d:%d], v[%d:%d], v[%d:%d], v[%d:%d]" % (
                    a, a + 3, x, x + 3, y, y + 3, a, a + 3))

    LPS = CHA + CHB
    A("s_mov_b32 s29, 0")
    for s in range(PF):
        issue(s)
        A("s_add_u32 s29, s29, 256")
    A("s_mov_b32 s31, %d" % NS)
    for i in range(2 * NT * 4):
        A("v_mov_b32 v%d, 0" % (vAcc + i))
    A("s_waitcnt vmcnt(%d)" % (LPS * (PF - 1)))
    A("s_barrier")
    st = 0
    reads(0, 0, st)
    L(name + "_loop")
    for s in range(RING):
        issue(s + PF)
        A("s_add_u32 s29, s29, 256")
        for step in range(4):
            if step < 3:
                reads(s, step + 1, st ^ 1)
                A("s_waitcnt lgkmcnt(%d)" % (NT + 2))
            else:
                A("s_waitcnt vmcnt(%d) lgkmcnt(0)" % (LPS * (PF - 1)))
                A("s_barrier")
                reads(s + 1, 0, st ^ 1)
            mfmas(s, step, st)
            st ^= 1
        A("s_sub_u32 s31, s31, 1")
        A("s_cmp_eq_u32 s31, 0")
        if s < RING - 1:
            A("s_cbranch_scc1 %s_exit" % name)
        else:
            A("s_cbranch_scc0 %s_loop" % name)
    L(name + "_exit")
    A("s_waitcnt vmcnt(0) lgkmcnt(0)")
    A("s_nop 7")
    A("s_nop 1")
    for t in range(2):
        for n in range(NT):
            a = acc(t, n)
            A("v_cvt_pk_bf16_f32 v%d, v%d, v%d" % (a, a, a + 1))
            A("v_cvt_pk_bf16_f32 v%d, v%d, v%d" % (a + 1, a + 2, a + 3))
            if not transposed:
                A("buffer_store_dwordx2 v[%d:%d], v%d, s[16:19], 0 offen offset:%d" % (a, a + 1, 8 + t, n * 32))
            else:
                A("s_mov_b32 s26, %d" % (n * 16 * pitchO))
                A("buffer_store_dwordx2 v[%d:%d], v%d, s[16:19], s26 offen" % (a, a + 1, 8 + t))
    L(name + "_done")
    end_kernel(name, vend)
    return RING * BUFSZ


P_OFF = 64 * MB


def k_gemm2():
    name = "g2_kernel"
    TM, NT, RING, PF, NS = 4, 5, 4, 3, 16
    CHA, CHB = 4, 5
    ASZ = 128 * 128
    BUFSZ = ASZ + 160 * 128
    begin_kernel(name)
    A("s_cmp_ge_u32 s2, 256")
    A("s_cbranch_scc1 %s_done" % name)
    A("s_load_dwordx2 s[4:5], s[0:1], 8")
    A("s_load_dwordx2 s[6:7], s[0:1], 16")
    A("s_load_dwordx2 s[24:25], s[0:1], 96")
    if "stamp" in VAR:
        A("s_load_dwordx2 s[92:93], s[0:1], 88")
        A("s_memtime s[70:71]")
        A("s_memrealtime s[80:81]")
    A("v_and_b32 v1, 63, v0")
    A("v_and_b32 v2, 15, v0")
    A("v_lshrrev_b32 v3, 4, v1")
    A("v_lshrrev_b32 v4, 6, v0")
    A("s_nop 0")
    A("v_readfirstlane_b32 s23, v4")
    A("s_and_b32 s26, s2, 7")
    A("s_lshr_b32 s27, s2, 3")
    A("s_and_b32 s21, s27, 3")
    A("s_lshr_b32 s27, s27, 2")
    A("s_lshl_b32 s26, s26, 3")
    A("s_add_u32 s26, s26, s27")
    A("s_and_b32 s20, s26, 15")
    A("s_lshr_b32 s33, s26, 4")
    A("s_and_b32 s22, s33, 1")
    A("s_lshr_b32 s32, s33, 1")
    A("s_waitcnt lgkmcnt(0)")
    A("s_cmp_eq_u32 s22, 0")
    A("s_cselect_b32 s4, s4, s6")
    A("s_cselect_b32 s5, s5, s7")
    srd(8, 4, S * S * 2)
    A("s_mul_i32 s26, s22, 0x%x" % (D * S * 2))
    A("s_add_u32 s27, s26, 0x%x" % ABT_OFF)
    A("s_add_u32 s12, s24, s27")
    A("s_addc_u32 s13, s25, 0")
    A("s_mov_b32 s14, 0x%x" % (D * S * 2))
    A("s_mov_b32 s15, 0x00020000")
    A("s_mul_i32 s26, s33, 0x%x" % (S * D * 4))
    A("s_add_u32 s27, s26, 0x%x" % P_OFF)
    A("s_add_u32 s16, s24, s27")
    A("s_addc_u32 s17, s25, 0")
    A("s_mov_b32 s18, 0x%x" % (S * D * 4))
    A("s_mov_b32 s19, 0x00020000")
    A("s_lshr_b32 s34, s23, 1")
    A("s_and_b32 s35, s23, 1")
    A("s_lshl_b32 s26, s20, 7")
    A("s_lshl_b32 s27, s34, 6")
    A("s_add_u32 s26, s26, s27")
    A("v_add_u32 v5, s26, v2")
    A("v_mul_u32_u24 v8, 2560, v5")
    A("s_mul_i32 s26, s21, 640")
    A("s_mul_i32 s27, s35, 320")
    A("s_add_u32 s26, s26, s27")
    A("v_add_u32 v8, s26, v8")
    A("v_lshl_add_u32 v8, v3, 4, v8")
    A("v_lshrrev_b32 v6, 3, v1")
    A("v_and_b32 v7, 7, v1")
    vSA = 10
    vSB = vSA + CHA
    for (base, CH, rs, rm) in ((vSA, CHA, 20, 128), (vSB, CHB, 21, 160)):
        for j in range(CH):
            A("s_mul_i32 s26, s23, %d" % (CH * 8))
            A("s_add_u32 s26, s26, %d" % (8 * j))
            A("v_add_u32 v60, s26, v6")
            A("v_bfe_u32 v61, v60, 1, 3")
            A("v_xor_b32 v61, v61, v7")
            A("s_mul_i32 s27, s%d, %d" % (rs, rm))
            A("v_add_u32 v60, s27, v60")
            A("v_lshlrev_b32 v60, 12, v60")
            A("v_lshl_add_u32 v%d, v61, 4, v60" % (base + j))
    vL = vSB + CHB
    A("s_lshl_b32 s26, s34, 13")
    A("s_mul_i32 s27, s35, 10240")
    A("s_add_u32 s27, s27, %d" % ASZ)
    for h in range(2):
        A("v_add_u32 v60, %d, v3" % (h * 4))
        A("v_bfe_u32 v61, v2, 1, 3")
        A("v_xor_b32 v60, v60, v61")
        A("v_lshlrev_b32 v60, 4, v60")
        A("v_lshl_add_u32 v60, v2, 7, v60")
        for seg in range(3):
            A("v_add_u32 v61, 0x%x, v60" % (seg << 16))
            A("v_add_u32 v%d, s26, v61" % (vL + h * 3 + seg))
            A("v_add_u32 v%d, s27, v61" % (vL + 6 + h * 3 + seg))
    A("s_mul_i32 s28, s23, %d" % (CHA * 1024))
    A("s_mul_i32 s30, s23, %d" % (CHB * 1024))
    A("s_add_u32 s30, s30, %d" % ASZ)
    base = (vL + 12 + 3) // 4 * 4
    vAcc = base
    vBf = vAcc + TM * NT * 4
    vAf = vBf + 2 * NT * 4
    vend = vAf + 2 * TM * 4
    assert vend <= 256

    def acc(t, n):
        return vAcc + (t * NT + n) * 4

    def issue_list(stage):
        buf = stage % RING
        l = []
        for j in range(CHA):
            l.append(["s_add_u32 m0, s28, %d" % (buf * BUFSZ + j * 1024), "s_nop 0",
                      "buffer_load_dwordx4 v%d, s[8:11], s29 offen lds" % (vSA + j)])
        for j in range(CHB):
            l.append(["s_add_u32 m0, s30, %d" % (buf * BUFSZ + j * 1024), "s_nop 0",
                      "buffer_load_dwordx4 v%d, s[12:15], s29 offen lds" % (vSB + j)])
        return l

    def issue(stage):
        for g in issue_list(stage):
            for x in g:
                A(x)

    def reads(stage, h, st):
        buf = stage % RING
        for t in range(TM):
            r = vAf + (st * TM + t) * 4
            off = buf * BUFSZ + t * 2048
            A("ds_read_b128 v[%d:%d], v%d offset:%d" % (r, r + 3, vL + h * 3 + (off >> 16), off & 65535))
        for n in range(NT):
            r = vBf + (st * NT + n) * 4
            off = buf * BUFSZ + n * 2048
            A("ds_read_b128 v[%d:%d], v%d offset:%d" % (r, r + 3, vL + 6 + h * 3 + (off >> 16), off & 65535))

    def mfmas(st, fill=()):
        fill = list(fill)
        cnt = 0
        for t in range(TM):
            for n in range(NT):
                cnt += 1
                if fill and cnt % 4 == 2:
                    for x in fill.pop(0):
                        A(x)
                a = acc(t, n)
                b = vBf + (st * NT + n) * 4
                r = vAf + (st * TM + t) * 4
                A("v_mfma_f32_16x16x32_bf16 v[%d:%d], v[%d:%d], v[%d:%d], v[%d:%d]" % (
                    a, a + 3, b, b + 3, r, r + 3, a, a + 3))

    LPS = CHA + CHB
    A("s_lshl_b32 s29, s32, 11")
    for s in range(PF):
        issue(s)
        A("s_add_u32 s29, s29, 128")
    A("s_mov_b32 s31, %d" % (NS // RING))
    for i in range(TM * NT * 4):
        A("v_mov_b32 v%d, 0" % (vAcc + i))
    A("s_waitcnt vmcnt(%d)" % (LPS * (PF - 1)))
    A("s_barrier")
    if "stamp" in VAR: A("s_memtime s[72:73]")
    reads(0, 0, 0)
    L(name + "_loop")
    for s in range(RING):
        il = issue_list(s + PF)
        reads(s, 1, 1)
        A("s_waitcnt lgkmcnt(%d)" % (TM + NT))
        mfmas(0, il[:5])
        for g in il[5:]:
            for x in g:
                A(x)
        A("s_add_u32 s29, s29, 128")
        A("s_waitcnt vmcnt(%d) lgkmcnt(0)" % (LPS * (PF - 1)))
        A("s_barrier")
        reads(s + 1, 0, 0)
        mfmas(1)
    A("s_sub_u32 s31, s31, 1")
    A("s_cmp_eq_u32 s31, 0")
    A("s_cbranch_scc0 %s_loop" % name)
    A("s_waitcnt vmcnt(0) lgkmcnt(0)")
    if "stamp" in VAR: A("s_memtime s[74:75]")
    A("s_nop 7")
    A("s_nop 1")
    A("s_barrier")
    A("s_mul_i32 s26, s23, %d" % (64 * 336))
    A("v_mul_u32_u24 v10, 336, v2")
    A("v_lshl_add_u32 v10, v3, 4, v10")
    A("v_add_u32 v10, s26, v10")
    for t in range(TM):
        for n in range(NT):
            a = acc(t, n)
            A("ds_write_b128 v10, v[%d:%d] offset:%d" % (a, a + 3, t * 16 * 336 + n * 64))
    A("s_mov_b32 s27, 0xccccccd")
    A("v_mul_hi_u32 v11, v1, s27")
    A("v_mul_u32_u24 v12, 20, v11")
    A("v_sub_u32 v12, v1, v12")
    A("s_lshl_b32 s27, s20, 7")
    A("s_lshl_b32 s36, s34, 6")
    A("s_add_u32 s27, s27, s36")
    A("s_mul_i32 s27, s27, 2560")
    A("s_mul_i32 s36, s21, 640")
    A("s_add_u32 s27, s27, s36")
    A("s_mul_i32 s36, s35, 320")
    A("s_add_u32 s27, s27, s36")
    A("s_waitcnt lgkmcnt(0)")
    for i in range(20):
        r = vAcc + i * 4
        A("v_mul_u32_u24 v13, 336, v11")
        A("v_lshl_add_u32 v13, v12, 4, v13")
        A("v_add_u32 v13, s26, v13")
        A("ds_read_b128 v[%d:%d], v13" % (r, r + 3))
        A("v_mul_u32_u24 v%d, 2560, v11" % (vBf + i))
        A("v_lshl_add_u32 v%d, v12, 4, v%d" % (vBf + i, vBf + i))
        A("v_add_u32 v11, 3, v11")
        A("v_add_u32 v12, 4, v12")
        A("v_cmp_le_u32 vcc, 20, v12")
        A("v_subrev_u32 v14, 20, v12")
        A("v_add_u32 v15, 1, v11")
        A("v_cndmask_b32 v12, v12, v14, vcc")
        A("v_cndmask_b32 v11, v11, v15, vcc")
    for i in range(20):
        r = vAcc + i * 4
        A("s_waitcnt lgkmcnt(%d)" % min(15, 19 - i))
        A("buffer_store_dwordx4 v[%d:%d], v%d, s[16:19], s27 offen" % (r, r + 3, vBf + i))
    if "stamp" in VAR:
        A("s_waitcnt vmcnt(0)")
        A("s_memtime s[76:77]")
        A("s_memrealtime s[82:83]")
        A("s_waitcnt lgkmcnt(0)")
        A("s_cmp_lg_u32 s2, 17")
        A("s_cbranch_scc1 %s_done" % name)
        A("s_mov_b32 s94, 256")
        A("s_mov_b32 s95, 0x00020000")
        A("s_sub_u32 s72, s72, s70")
        A("s_sub_u32 s74, s74, s70")
        A("s_sub_u32 s76, s76, s70")
        A("s_sub_u32 s82, s82, s80")
        A("v_mov_b32 v10, s72")
        A("v_mov_b32 v11, s74")
        A("v_mov_b32 v12, s76")
        A("v_mov_b32 v13, s82")
        A("v_mov_b32 v14, 0")
        A("buffer_store_dwordx4 v[10:13], v14, s[92:95], 0 offen")
    L(name + "_done")
    end_kernel(name, vend)
    return RING * BUFSZ


def setup_g1():
    A("s_load_dwordx2 s[4:5], s[0:1], 24")
    A("s_load_dwordx2 s[6:7], s[0:1], 32")
    A("s_load_dwordx2 s[24:25], s[0:1], 96")
    A("s_and_b32 s20, s2, 15")
    A("s_lshr_b32 s26, s2, 4")
    A("s_and_b32 s21, s26, 7")
    A("s_lshr_b32 s22, s26, 3")
    A("s_waitcnt lgkmcnt(0)")
    A("s_cmp_eq_u32 s22, 0")
    A("s_cselect_b32 s4, s4, s6")
    A("s_cselect_b32 s5, s5, s7")
    srd(12, 4, D * D * 2)
    srd(8, 24, S * D * 2, XL_OFF if XL_OFF else None)
    A("s_mul_i32 s26, s22, 0x%x" % (D * S * 2))
    A("s_add_u32 s26, s26, 0x%x" % ABT_OFF)
    A("s_add_u32 s16, s24, s26")
    A("s_addc_u32 s17, s25, 0")
    A("s_mov_b32 s18, 0x%x" % (D * S * 2))
    A("s_mov_b32 s19, 0x00020000")


def setup_g2():
    A("s_load_dwordx2 s[4:5], s[0:1], 8")
    A("s_load_dwordx2 s[6:7], s[0:1], 16")
    A("s_load_dwordx2 s[24:25], s[0:1], 96")
    A("s_and_b32 s26, s2, 7")
    A("s_lshr_b32 s27, s2, 3")
    A("s_and_b32 s21, s27, 7")
    A("s_lshr_b32 s27, s27, 3")
    A("s_lshl_b32 s26, s26, 2")
    A("s_add_u32 s26, s26, s27")
    A("s_and_b32 s20, s26, 15")
    A("s_lshr_b32 s22, s26, 4")
    A("s_waitcnt lgkmcnt(0)")
    A("s_cmp_eq_u32 s22, 0")
    A("s_cselect_b32 s4, s4, s6")
    A("s_cselect_b32 s5, s5, s7")
    srd(8, 4, S * S * 2)
    A("s_mul_i32 s26, s22, 0x%x" % (D * S * 2))
    A("s_add_u32 s27, s26, 0x%x" % ABT_OFF)
    A("s_add_u32 s12, s24, s27")
    A("s_addc_u32 s13, s25, 0")
    A("s_mov_b32 s14, 0x%x" % (D * S * 2))
    A("s_mov_b32 s15, 0x00020000")
    A("s_add_u32 s27, s26, 0x%x" % Y_OFF)
    A("s_add_u32 s16, s24, s27")
    A("s_addc_u32 s17, s25, 0")
    A("s_mov_b32 s18, 0x%x" % (S * D * 2))
    A("s_mov_b32 s19, 0x00020000")


def k_ln2():
    name = "ln2_kernel"
    begin_kernel(name)
    A("s_cmp_ge_u32 s2, 512")
    A("s_cbranch_scc1 %s_done" % name)
    A("s_load_dwordx2 s[4:5], s[0:1], 0")
    A("s_load_dwordx2 s[6:7], s[0:1], 96")
    A("s_load_dwordx2 s[24:25], s[0:1], 48")
    A("s_load_dwordx2 s[26:27], s[0:1], 80")
    A("v_lshrrev_b32 v1, 6, v0")
    A("s_lshl_b32 s3, s2, 2")
    A("v_add_u32 v3, s3, v1")
    A("v_mul_u32_u24 v1, 1280, v3")
    A("v_and_b32 v2, 63, v0")
    A("v_lshl_add_u32 v1, v2, 2, v1")
    A("v_lshlrev_b32 v4, 2, v2")
    A("s_waitcnt lgkmcnt(0)")
    srd(8, 4, S * D * 2)
    srd(12, 6, WS_SIZE)
    srd(16, 24, D * 2)
    srd(28, 26, S * D * 2)
    A("v_lshlrev_b32 v5, 1, v1")
    for i in range(5):
        A("buffer_load_dword v%d, v1, s[8:11], 0 offen offset:%d" % (10 + i, i * 256))
        A("buffer_load_dword v%d, v4, s[16:19], 0 offen offset:%d" % (55 + i, i * 256))
    for p in range(4):
        A("s_mov_b32 s20, 0x%x" % (P_OFF + p * S * D * 4))
        for i in range(5):
            A("buffer_load_dwordx2 v[%d:%d], v5, s[12:15], s20 offen offset:%d" % (64 + p * 10 + 2 * i, 65 + p * 10 + 2 * i, i * 512))
    A("s_waitcnt vmcnt(0)")
    f = list(range(20, 30))
    q = list(range(30, 40))
    for i in range(5):
        A("v_add_f32 v60, v%d, v%d" % (64 + 2 * i, 84 + 2 * i))
        A("v_add_f32 v61, v%d, v%d" % (65 + 2 * i, 85 + 2 * i))
        A("v_cvt_pk_bf16_f32 v62, v60, v61")
        unpack(60, 61, 62)
        A("v_add_f32 v62, v%d, v%d" % (74 + 2 * i, 94 + 2 * i))
        A("v_add_f32 v63, v%d, v%d" % (75 + 2 * i, 95 + 2 * i))
        A("v_cvt_pk_bf16_f32 v46, v62, v63")
        unpack(62, 63, 46)
        A("v_sub_f32 v60, v60, v62")
        A("v_sub_f32 v61, v61, v63")
        A("v_cvt_pk_bf16_f32 v62, v60, v61")
        unpack(60, 61, 62)
        unpack(62, 63, 10 + i)
        A("v_add_f32 v60, v60, v62")
        A("v_add_f32 v61, v61, v63")
        A("v_cvt_pk_bf16_f32 v%d, v60, v61" % (15 + i))
        unpack(f[2 * i], f[2 * i + 1], 15 + i)
    layernorm10(f, q, [40, 41, 42, 43, 44, 45], 20)
    A("v_mov_b32 v40, 0")
    for i in range(5):
        unpack(60, 61, 55 + i)
        A("v_fmac_f32 v40, v60, v%d" % q[2 * i])
        A("v_fmac_f32 v40, v61, v%d" % q[2 * i + 1])
    wave_reduce("add_f32", 40, 20)
    A("v_mov_b32 v40, s20")
    A("v_cvt_pk_bf16_f32 v40, v40, v40")
    A("s_mov_b32 s20, 0x%x" % H_OFF)
    A("s_mov_b32 s21, 0x%x" % HL_OFF)
    for i in range(5):
        A("v_cvt_pk_bf16_f32 v%d, v%d, v%d" % (50 + i, q[2 * i], q[2 * i + 1]))
        A("v_add_f32 v60, v%d, v%d" % (f[2 * i], q[2 * i]))
        A("v_add_f32 v61, v%d, v%d" % (f[2 * i + 1], q[2 * i + 1]))
        A("v_cvt_pk_bf16_f32 v%d, v60, v61" % (10 + i))
        A("buffer_store_dword v%d, v1, s[28:31], 0 offen offset:%d" % (10 + i, i * 256))
        A("buffer_store_dword v%d, v1, s[12:15], s20 offen offset:%d" % (15 + i, i * 256))
        A("buffer_store_dword v%d, v1, s[12:15], s21 offen offset:%d" % (50 + i, i * 256))
    A("s_cmp_lg_u32 s2, 0")
    A("s_cbranch_scc1 %s_nz" % name)
    A("v_lshlrev_b32 v60, 4, v0")
    for i in range(4):
        A("v_mov_b32 v%d, 0" % (64 + i))
    A("s_mov_b32 s20, 0x%x" % ACC_OFF)
    for j in range(5):
        A("buffer_store_dwordx4 v[64:67], v60, s[12:15], s20 offen sc1")
        A("s_add_u32 s20, s20, 4096")
    L(name + "_nz")
    A("v_lshlrev_b32 v3, 1, v3")
    A("s_mov_b32 s20, 0x%x" % R_OFF)
    A("v_cmp_eq_u32 vcc, 0, v2")
    A("s_and_saveexec_b64 s[22:23], vcc")
    A("buffer_store_short v40, v3, s[12:15], s20 offen")
    L(name + "_done")
    end_kernel(name, 104)


def k_ffn1():
    name = "ffn1_kernel"
    begin_kernel(name)
    A("s_cmp_ge_u32 s2, 96")
    A("s_cbranch_scc1 %s_done" % name)
    A("s_load_dwordx2 s[4:5], s[0:1], 56")
    A("s_load_dwordx2 s[6:7], s[0:1], 64")
    A("s_load_dwordx2 s[24:25], s[0:1], 96")
    A("s_load_dwordx2 s[50:51], s[0:1], 72")
    A("s_load_dwordx4 s[52:55], s[0:1], 80")
    A("v_and_b32 v1, 63, v0")
    A("v_and_b32 v2, 15, v0")
    A("v_lshrrev_b32 v3, 4, v1")
    A("v_lshrrev_b32 v4, 6, v0")
    A("s_waitcnt lgkmcnt(0)")
    srd(8, 4, D * F * 2)
    srd(12, 6, D * F * 2)
    srd(16, 24, WS_SIZE)
    srd(56, 50, D * F * 2)
    srd(60, 52, S * D * 2)
    srd(64, 54, 256)
    A("v_lshlrev_b32 v5, 4, v0")
    A("s_mov_b32 s20, 0x%x" % R_OFF)
    A("buffer_load_dwordx4 v[8:11], v5, s[16:19], s20 offen")
    A("v_mul_u32_u24 v5, 160, v4")
    A("v_lshl_add_u32 v5, v3, 3, v5")
    A("v_mul_u32_u24 v5, 3072, v5")
    A("s_lshl_b32 s20, s2, 4")
    A("v_add_u32 v6, s20, v2")
    A("v_lshl_add_u32 v5, v6, 1, v5")
    vG, vU = 64, 84
    rG, rU = 128, 168
    for step in range(5):
        for j in range(8):
            A("s_mov_b32 s20, %d" % ((step * 32 + j) * 3072))
            A("buffer_load_ushort v%d, v5, s[8:11], s20 offen" % (rG + step * 8 + j))
            A("buffer_load_ushort v%d, v5, s[12:15], s20 offen" % (rU + step * 8 + j))
    A("s_mul_i32 s20, s2, 20480")
    A("v_lshlrev_b32 v7, 4, v0")
    for j in range(5):
        A("buffer_load_dwordx4 v[%d:%d], v7, s[56:59], s20 offen" % (208 + 4 * j, 211 + 4 * j))
        A("s_add_u32 s20, s20, 4096")
    A("s_mov_b32 s21, 0x7fff")
    A("v_lshlrev_b32 v6, 3, v0")
    A("v_sub_u32 v6, 2047, v6")
    A("s_waitcnt vmcnt(63)")
    for i in range(8):
        d = 8 + i // 2
        if i & 1:
            A("v_lshrrev_b32 v20, 16, v%d" % d)
        else:
            A("v_and_b32 v20, 0xffff, v%d" % d)
        A("v_bfe_i32 v21, v20, 15, 1")
        A("v_and_b32 v21, s21, v21")
        A("v_or_b32 v21, 0x8000, v21")
        A("v_xor_b32 v20, v20, v21")
        A("v_subrev_u32 v21, %d, v6" % i)
        A("v_lshl_or_b32 v%d, v20, 11, v21" % (24 + i))
    for rnd in range(8):
        A("v_max3_u32 v20, v24, v25, v26")
        A("v_max3_u32 v20, v20, v27, v28")
        A("v_max3_u32 v20, v20, v29, v30")
        A("v_max_u32 v20, v20, v31")
        wave_reduce("max_u32", 20, 20)
        A("v_mov_b32 v20, s20")
        A("v_lshlrev_b32 v21, 2, v4")
        A("ds_write_b32 v21, v20 offset:%d" % (rnd * 16))
        A("s_waitcnt lgkmcnt(0)")
        A("s_barrier")
        A("v_mov_b32 v21, 0")
        A("ds_read_b128 v[32:35], v21 offset:%d" % (rnd * 16))
        A("s_waitcnt lgkmcnt(0)")
        A("v_max3_u32 v20, v32, v33, v34")
        A("v_max_u32 v20, v20, v35")
        for i in range(8):
            A("v_cmp_eq_u32 vcc, v20, v%d" % (24 + i))
            A("s_nop 1")
            A("v_cndmask_b32 v%d, v%d, 0, vcc" % (24 + i, 24 + i)) if False else None
            A("v_cndmask_b32_e64 v%d, v%d, 0, vcc" % (24 + i, 24 + i))
        A("v_and_b32 v21, 2047, v20")
        A("v_sub_u32 v21, 2047, v21")
        A("s_nop 0")
        A("v_readfirstlane_b32 s%d, v21" % (40 + rnd))
    A("v_and_b32 v20, 7, v1")
    A("v_mov_b32 v21, s40")
    for j in range(1, 8):
        A("v_cmp_eq_u32 vcc, %d, v20" % j)
        A("v_mov_b32 v22, s%d" % (40 + j))
        A("s_nop 0")
        A("v_cndmask_b32 v21, v21, v22, vcc")
    A("v_mul_u32_u24 v21, 1280, v21")
    A("v_mul_u32_u24 v22, 320, v4")
    A("v_add_u32 v21, v21, v22")
    A("v_lshl_add_u32 v21, v3, 4, v21")
    A("s_mov_b32 s20, 0x%x" % HL_OFF)
    vX = 104
    for step in range(5):
        A("buffer_load_dwordx4 v[%d:%d], v21, s[16:19], s20 offen offset:%d" % (vX + step * 4, vX + step * 4 + 3, step * 64))
    for i in range(8):
        A("v_mov_b32 v%d, 0" % (40 + i))
    A("s_waitcnt vmcnt(0)")
    for i in range(20):
        A("v_lshl_or_b32 v%d, v%d, 16, v%d" % (vG + i, rG + 2 * i + 1, rG + 2 * i))
        A("v_lshl_or_b32 v%d, v%d, 16, v%d" % (vU + i, rU + 2 * i + 1, rU + 2 * i))
    for j in range(5):
        A("ds_write_b128 v7, v[%d:%d] offset:%d" % (208 + 4 * j, 211 + 4 * j, 9216 + 4096 * j))
    for step in range(5):
        x = vX + step * 4
        A("v_mfma_f32_16x16x32_bf16 v[40:43], v[%d:%d], v[%d:%d], v[40:43]" % (x, x + 3, vG + step * 4, vG + step * 4 + 3))
        A("v_mfma_f32_16x16x32_bf16 v[44:47], v[%d:%d], v[%d:%d], v[44:47]" % (x, x + 3, vU + step * 4, vU + step * 4 + 3))
    A("s_nop 7")
    A("s_nop 1")
    A("v_lshlrev_b32 v20, 4, v1")
    A("v_lshl_add_u32 v20, v4, 11, v20")
    A("ds_write_b128 v20, v[40:43] offset:256")
    A("ds_write_b128 v20, v[44:47] offset:1280")
    A("s_waitcnt lgkmcnt(0)")
    A("s_barrier")
    A("v_cmp_gt_u32 vcc, 32, v0")
    A("s_and_saveexec_b64 s[22:23], vcc")
    A("s_cbranch_execz %s_p2" % name)
    A("v_lshlrev_b32 v20, 4, v1")
    for w in range(1, 4):
        A("ds_read_b128 v[48:51], v20 offset:%d" % (256 + w * 2048))
        A("ds_read_b128 v[52:55], v20 offset:%d" % (1280 + w * 2048))
        A("s_waitcnt lgkmcnt(0)")
        for i in range(8):
            A("v_add_f32 v%d, v%d, v%d" % (40 + i, 40 + i, 48 + i))
    A("v_lshlrev_b32 v21, 7, v3")
    A("v_lshl_add_u32 v21, v2, 1, v21")
    for r in range(4):
        bf_round(40 + r, 40 + r)
        bf_round(44 + r, 44 + r)
        A("v_mul_f32 v48, 0xbfb8aa3b, v%d" % (40 + r))
        A("v_exp_f32 v48, v48")
        A("s_nop 0")
        A("v_add_f32 v48, 1.0, v48")
        A("v_rcp_f32 v48, v48")
        A("s_nop 0")
        A("v_mul_f32 v48, v48, v%d" % (40 + r))
        bf_round(48, 48)
        A("v_mul_f32 v48, v48, v%d" % (44 + r))
        A("v_cvt_pk_bf16_f32 v48, v48, v48")
        A("ds_write_b16 v21, v48 offset:%d" % (8704 + r * 32))
    L(name + "_p2")
    A("s_mov_b64 exec, s[22:23]")
    A("s_waitcnt lgkmcnt(0)")
    A("s_barrier")
    A("v_and_b32 v20, 7, v1")
    A("v_lshlrev_b32 v20, 5, v20")
    A("v_and_b32 v22, 1, v3")
    A("v_lshl_add_u32 v20, v22, 4, v20")
    A("ds_read_b128 v[64:67], v20 offset:8704")
    A("v_mul_u32_u24 v21, 10240, v22")
    A("v_lshl_add_u32 v21, v2, 1, v21")
    A("v_mul_u32_u24 v23, 320, v4")
    A("v_add_u32 v21, v21, v23")
    for n in range(10):
        for j in range(8):
            A("ds_read_u16 v%d, v21 offset:%d" % (128 + n * 8 + j, 9216 + j * 1280 + n * 32))
    A("s_waitcnt lgkmcnt(0)")
    A("v_cmp_gt_u32 vcc, 2, v3")
    A("s_nop 1")
    for i in range(4):
        A("v_cndmask_b32_e64 v%d, 0, v%d, vcc" % (64 + i, 64 + i))
    for n in range(10):
        for i in range(4):
            A("v_lshl_or_b32 v%d, v%d, 16, v%d" % (68 + n * 4 + i, 128 + n * 8 + 2 * i + 1, 128 + n * 8 + 2 * i))
    A("s_nop 1")
    for n in range(10):
        A("v_mfma_f32_16x16x32_bf16 v[%d:%d], v[64:67], v[%d:%d], 0" % (128 + n * 4, 131 + n * 4, 68 + n * 4, 71 + n * 4))
    A("s_nop 7")
    A("s_nop 1")
    A("v_mul_u32_u24 v20, 10240, v3")
    A("v_lshl_add_u32 v20, v2, 2, v20")
    A("v_mul_u32_u24 v23, 640, v4")
    A("v_add_u32 v20, v20, v23")
    A("s_and_saveexec_b64 s[22:23], vcc")
    A("s_mov_b32 s20, 0x%x" % ACC_OFF)
    for r in range(4):
        for n in range(10):
            A("buffer_atomic_add_f32 v%d, v20, s[16:19], s20 offen offset:%d" % (128 + n * 4 + r, n * 64))
        A("s_add_u32 s20, s20, 2560")
    A("s_mov_b64 exec, s[22:23]")
    A("s_waitcnt vmcnt(0)")
    A("s_barrier")
    A("v_cmp_eq_u32 vcc, 0, v0")
    A("s_and_saveexec_b64 s[22:23], vcc")
    A("s_cbranch_execz %s_cnt" % name)
    A("v_mov_b32 v20, 1")
    A("v_mov_b32 v21, 0")
    A("buffer_atomic_add v20, v21, s[64:67], 0 offen sc0")
    A("s_waitcnt vmcnt(0)")
    A("ds_write_b32 v21, v20 offset:128")
    L(name + "_cnt")
    A("s_mov_b64 exec, s[22:23]")
    A("s_waitcnt lgkmcnt(0)")
    A("s_barrier")
    A("v_mov_b32 v21, 0")
    A("ds_read_b32 v20, v21 offset:128")
    A("s_waitcnt lgkmcnt(0)")
    A("v_readfirstlane_b32 s20, v20")
    A("s_cmp_lg_u32 s20, 95")
    A("s_cbranch_scc1 %s_done" % name)
    A("v_lshrrev_b32 v20, 5, v0")
    A("v_mov_b32 v21, s40")
    for j in range(1, 8):
        A("v_cmp_eq_u32 vcc, %d, v20" % j)
        A("v_mov_b32 v22, s%d" % (40 + j))
        A("s_nop 0")
        A("v_cndmask_b32 v21, v21, v22, vcc")
    A("v_and_b32 v22, 31, v0")
    A("v_mul_u32_u24 v23, 2560, v20")
    A("v_lshl_add_u32 v23, v22, 2, v23")
    A("v_mul_u32_u24 v24, 1280, v21")
    A("v_lshl_add_u32 v24, v22, 1, v24")
    A("v_lshlrev_b32 v25, 1, v21")
    A("s_mov_b32 s20, 0x%x" % R_OFF)
    A("buffer_load_ushort v26, v25, s[16:19], s20 offen")
    A("s_mov_b32 s20, 0x%x" % ACC_OFF)
    A("s_mov_b32 s21, 0x%x" % H_OFF)
    A("s_mov_b32 s28, 0x%x" % HL_OFF)
    for i in range(20):
        A("v_mov_b32 v%d, 0" % (64 + i))
    for i in range(20):
        A("buffer_atomic_add_f32 v%d, v23, s[16:19], s20 offen offset:%d sc0" % (64 + i, i * 128))
        A("buffer_load_ushort v%d, v24, s[16:19], s21 offen offset:%d" % (84 + i, i * 64))
        A("buffer_load_ushort v%d, v24, s[16:19], s28 offen offset:%d" % (104 + i, i * 64))
    A("s_waitcnt vmcnt(0)")
    A("v_lshlrev_b32 v26, 16, v26")
    A("v_mul_f32 v26, 0xbfb8aa3b, v26")
    A("v_exp_f32 v26, v26")
    A("s_nop 0")
    A("v_add_f32 v26, 1.0, v26")
    A("v_rcp_f32 v26, v26")
    A("s_nop 0")
    bf_round(26, 26)
    for i in range(20):
        bf_round(64 + i, 64 + i)
        A("v_mul_f32 v20, v26, v%d" % (64 + i))
        bf_round(20, 20)
        A("v_lshlrev_b32 v21, 16, v%d" % (104 + i))
        A("v_add_f32 v20, v20, v21")
        bf_round(20, 20)
        A("v_lshlrev_b32 v21, 16, v%d" % (84 + i))
        A("v_add_f32 v20, v20, v21")
        A("v_cvt_pk_bf16_f32 v%d, v20, v20" % (64 + i))
        A("buffer_store_short v%d, v24, s[60:63], 0 offen offset:%d" % (64 + i, i * 64))
    L(name + "_done")
    end_kernel(name, 228)


def k_ffn2():
    name = "ffn2_kernel"
    begin_kernel(name)
    A("s_cmp_ge_u32 s2, 40")
    A("s_cbranch_scc1 %s_done" % name)
    A("s_load_dwordx2 s[4:5], s[0:1], 72")
    A("s_load_dwordx2 s[6:7], s[0:1], 80")
    A("s_load_dwordx2 s[24:25], s[0:1], 96")
    A("v_and_b32 v1, 63, v0")
    A("v_and_b32 v2, 15, v0")
    A("v_lshrrev_b32 v3, 4, v1")
    A("v_lshrrev_b32 v4, 6, v0")
    A("s_waitcnt lgkmcnt(0)")
    srd(8, 4, D * F * 2)
    srd(12, 6, S * D * 2)
    srd(16, 24, WS_SIZE)
    A("s_add_u32 s26, s24, 0x%x" % IDX_OFF)
    A("s_addc_u32 s27, s25, 0")
    A("s_load_dwordx8 s[40:47], s[26:27], 0")
    A("v_mul_u32_u24 v5, 384, v4")
    A("v_lshl_add_u32 v5, v3, 3, v5")
    A("v_mul_u32_u24 v5, 1280, v5")
    A("s_lshl_b32 s20, s2, 4")
    A("v_add_u32 v6, s20, v2")
    A("v_lshl_add_u32 v5, v6, 1, v5")
    vW = 64
    rW = 160
    for step in range(12):
        for j in range(8):
            A("s_mov_b32 s20, %d" % ((step * 32 + j) * 1280))
            A("buffer_load_ushort v%d, v5, s[8:11], s20 offen" % (rW + step * 8 + j))
    A("v_and_b32 v20, 7, v1")
    A("v_mul_u32_u24 v20, 3072, v20")
    A("v_mul_u32_u24 v21, 768, v4")
    A("v_add_u32 v20, v20, v21")
    A("v_lshl_add_u32 v20, v3, 4, v20")
    A("s_mov_b32 s20, 0x%x" % T_OFF)
    vX = 112
    for step in range(12):
        A("buffer_load_dwordx4 v[%d:%d], v20, s[16:19], s20 offen offset:%d" % (vX + step * 4, vX + step * 4 + 3, step * 64))
    A("s_waitcnt lgkmcnt(0)")
    A("v_cmp_eq_u32 vcc, 1, v3")
    A("s_mov_b32 s20, 0x%x" % R_OFF)
    A("s_mov_b32 s21, 0x%x" % H_OFF)
    A("s_mov_b32 s28, 0x%x" % HL_OFF)
    for r in range(4):
        A("v_mov_b32 v20, s%d" % (40 + r))
        A("v_mov_b32 v21, s%d" % (44 + r))
        A("v_cndmask_b32 v20, v20, v21, vcc")
        A("v_lshlrev_b32 v21, 1, v20")
        A("buffer_load_ushort v%d, v21, s[16:19], s20 offen" % (24 + r))
        A("v_mul_u32_u24 v20, 1280, v20")
        A("v_lshl_add_u32 v%d, v6, 1, v20" % (28 + r))
        A("buffer_load_ushort v%d, v%d, s[16:19], s21 offen" % (32 + r, 28 + r))
        A("buffer_load_ushort v%d, v%d, s[16:19], s28 offen" % (36 + r, 28 + r))
    for i in range(4):
        A("v_mov_b32 v%d, 0" % (40 + i))
    A("s_waitcnt vmcnt(0)")
    for i in range(48):
        A("v_lshl_or_b32 v%d, v%d, 16, v%d" % (vW + i, rW + 2 * i + 1, rW + 2 * i))
    A("s_nop 1")
    for step in range(12):
        x = vX + step * 4
        A("v_mfma_f32_16x16x32_bf16 v[40:43], v[%d:%d], v[%d:%d], v[40:43]" % (x, x + 3, vW + step * 4, vW + step * 4 + 3))
    A("s_nop 7")
    A("s_nop 1")
    A("v_lshlrev_b32 v20, 4, v1")
    A("v_lshl_add_u32 v20, v4, 10, v20")
    A("ds_write_b128 v20, v[40:43]")
    A("s_waitcnt lgkmcnt(0)")
    A("s_barrier")
    A("v_cmp_gt_u32 vcc, 32, v0")
    A("s_and_saveexec_b64 s[22:23], vcc")
    A("s_cbranch_execz %s_done" % name)
    A("v_lshlrev_b32 v20, 4, v1")
    for w in range(1, 4):
        A("ds_read_b128 v[48:51], v20 offset:%d" % (w * 1024))
        A("s_waitcnt lgkmcnt(0)")
        for i in range(4):
            A("v_add_f32 v%d, v%d, v%d" % (40 + i, 40 + i, 48 + i))
    A("s_waitcnt vmcnt(0)")
    for r in range(4):
        bf_round(40 + r, 40 + r)
        A("v_lshlrev_b32 v20, 16, v%d" % (24 + r))
        A("v_mul_f32 v20, 0xbfb8aa3b, v20")
        A("v_exp_f32 v20, v20")
        A("s_nop 0")
        A("v_add_f32 v20, 1.0, v20")
        A("v_rcp_f32 v20, v20")
        A("s_nop 0")
        bf_round(20, 20)
        A("v_mul_f32 v20, v20, v%d" % (40 + r))
        bf_round(20, 20)
        A("v_lshlrev_b32 v21, 16, v%d" % (36 + r))
        A("v_add_f32 v20, v20, v21")
        bf_round(20, 20)
        A("v_lshlrev_b32 v21, 16, v%d" % (32 + r))
        A("v_add_f32 v20, v20, v21")
        A("v_cvt_pk_bf16_f32 v20, v20, v20")
        A("buffer_store_short v20, v%d, s[12:15], 0 offen" % (28 + r))
    L(name + "_done")
    end_kernel(name, 256)


def main():
    hdr = open("cdna_kernels/%s.s.ref" % NAME).read().split("; @launch")[0]
    body_start = len(out)
    out.append('.amdgcn_target "amdgcn-amd-amdhsa--gfx950"')
    out.append(".text")
    k_lnx()
    lds1 = k_gemm("g1_kernel", 256, setup_g1, 1280, 1280, 4096, 640, 80, 3, True)
    lds2 = k_gemm2()
    k_ln2()
    k_ffn1()
    launches = [
        "; @launch kernel=lnx_kernel grid=(512,1,1) block=(256,1,1) lds=0",
        "; @launch kernel=g1_kernel grid=(256,1,1) block=(256,1,1) lds=%d" % lds1,
        "; @launch kernel=g2_kernel grid=(256,1,1) block=(256,1,1) lds=%d" % lds2,
        "; @launch kernel=ln2_kernel grid=(512,1,1) block=(256,1,1) lds=0",
        "; @launch kernel=ffn1_kernel grid=(96,1,1) block=(256,1,1) lds=29696",
    ]
    txt = hdr + "\n".join(launches) + "\n" + "\n".join(out) + "\n"
    txt += '.section .rodata,"a"\n'
    for name, vgpr, sgpr in kds:
        acc = (vgpr + 3) // 4 * 4
        txt += ".p2align 6\n.amdhsa_kernel %s\n" % name
        txt += "  .amdhsa_next_free_vgpr %d\n  .amdhsa_next_free_sgpr %d\n  .amdhsa_accum_offset %d\n" % (vgpr, sgpr, acc)
        txt += "  .amdhsa_group_segment_fixed_size 0\n  .amdhsa_kernarg_size 104\n  .amdhsa_user_sgpr_count 2\n"
        txt += "  .amdhsa_user_sgpr_kernarg_segment_ptr 1\n  .amdhsa_system_sgpr_workgroup_id_x 1\n.end_amdhsa_kernel\n"
    dst = sys.argv[1] if len(sys.argv) > 1 else "cdna_kernels/%s.s" % NAME
    open(dst, "w").write(txt)


main()
```
